```python
import torch

def _softmax(x, axis=-1):
    return torch.softmax(x, dim=axis)
def _gelu(x):
    return torch.nn.functional.gelu(x, approximate="tanh")
def _silu(x):
    return torch.nn.functional.silu(x)
def _sigmoid(x):
    return torch.sigmoid(x)
def _layernorm(x, axis=-1, eps=1e-5):
    m = x.mean(dim=axis, keepdim=True)
    v = x.var(dim=axis, keepdim=True, unbiased=False)
    return (x - m) / torch.sqrt(v + eps)
def _scatter_add(tgt, idx, src, axis=0):
    return tgt.clone().index_add_(axis, idx, src)
def _segment_sum(src, seg, n):
    out = torch.zeros((n,) + src.shape[1:], dtype=src.dtype)
    return out.index_add_(0, seg, src)
def _pad(x, pw):
    flat = tuple(v for pair in reversed(pw) for v in pair)
    return torch.nn.functional.pad(x, flat)

kernel_name = 'sequential_preLN__mha_block_cached__geglu_ffn__decode'

def setup_inputs():

    _w = (lambda a: (lambda t: t.to(torch.bfloat16) if t.is_floating_point() else t)(torch.as_tensor(a)))
    def _A_setup():
        B, Sq, D = 1, 1, 512
        H, Sk, Dh = 32, 16384, 128
        return {
            "x": _w((lambda *s: torch.randn(*s, dtype=torch.bfloat16) * 0.05)(B, Sq, D)),
            "k_cache": _w((lambda *s: torch.randn(*s, dtype=torch.bfloat16) * 3.2)(B, H, Sk, Dh)),
            "v_cache": _w((lambda *s: torch.randn(*s, dtype=torch.bfloat16) * 0.4)(B, H, Sk, Dh)),
            "wq": _w((lambda *s: torch.randn(*s, dtype=torch.bfloat16) * 3.2)(D, H * Dh) * (D ** -0.5)),
            "wo": _w((lambda *s: torch.randn(*s, dtype=torch.bfloat16) * 0.4)(H * Dh, D) * ((H * Dh) ** -0.5)),
        }
    _A_in = _A_setup()

    def _B_setup():
        B, S, D, F = 1, 1, 512, 1792
        return {
            "x": _w((lambda *s: torch.randn(*s, dtype=torch.bfloat16) * 0.05)(B, S, D)),
            "w_gate": _w((lambda *s: torch.randn(*s, dtype=torch.bfloat16) * 0.05)(D, F)),
            "w_up": _w((lambda *s: torch.randn(*s, dtype=torch.bfloat16) * 0.05)(D, F)),
            "w_down": _w((lambda *s: torch.randn(*s, dtype=torch.bfloat16) * 0.05)(F, D)),
        }
    _B_in = _B_setup()

    return {
        "A_x": _A_in["x"],
        "A_k_cache": _A_in["k_cache"],
        "A_v_cache": _A_in["v_cache"],
        "A_wq": _A_in["wq"],
        "A_wo": _A_in["wo"],
        "B_x": _B_in["x"],
        "B_w_gate": _B_in["w_gate"],
        "B_w_up": _B_in["w_up"],
        "B_w_down": _B_in["w_down"],
    }

def reference(A_x, A_k_cache, A_v_cache, A_wq, A_wo, B_x, B_w_gate, B_w_up, B_w_down):
    def _A_ref(x, k_cache, v_cache, wq, wo):
        B, Sq, D = x.shape
        H, Dh = 32, 128
        q = (lambda x, *d: x.permute(*d))((x @ wq).reshape(B, Sq, H, Dh), 0, 2, 1, 3)
        scores = torch.einsum("bhqd,bhkd->bhqk", q, k_cache) * (Dh ** -0.5)
        p = _softmax(scores, axis=-1)
        o = torch.einsum("bhqk,bhkd->bhqd", p, v_cache)
        return (lambda x, *d: x.permute(*d))(o, 0, 2, 1, 3).reshape(B, Sq, H * Dh) @ wo

    def _B_ref(x, w_gate, w_up, w_down):
        return (_gelu(x @ w_gate) * (x @ w_up)) @ w_down

    x = A_x
    h = x + _A_ref(_layernorm(x, axis=-1), A_k_cache, A_v_cache, A_wq, A_wo)
    h2 = h + _B_ref(_layernorm(h, axis=-1), B_w_gate, B_w_up, B_w_down)
    return h2
```

```python
import re

class Asm:
    def __init__(self):
        self.lines = []
    def __call__(self, s):
        for ln in s.strip().split('\n'):
            ln = ln.strip()
            if ln:
                self.lines.append('    ' + ln)
    def label(self, l):
        self.lines.append(l + ':')
    def raw(self, s):
        self.lines.append(s)
    def c(self, s):
        self.lines.append('    ; ' + s)
    def text(self):
        return '\n'.join(self.lines) + '\n'

REG_RE = re.compile(r'\b([vsa])(\d+)\b|\b([vsa])\[(\d+):(\d+)\]')

def parse_regs(opnd):
    out = []
    for m in REG_RE.finditer(opnd):
        if m.group(1):
            out.append((m.group(1), int(m.group(2))))
        else:
            for i in range(int(m.group(4)), int(m.group(5)) + 1):
                out.append((m.group(3), i))
    if re.search(r'\bvcc\b', opnd):
        out.append(('s', 'vcc'))
    return out

TRANS = ('v_exp_f32', 'v_log_f32', 'v_rcp_f32', 'v_rsq_f32', 'v_sqrt_f32', 'v_sin_f32', 'v_cos_f32')

def classify(line):
    s = line.split(';')[0].strip()
    if not s or s.endswith(':') or s.startswith('.'):
        return None
    parts = s.split(None, 1)
    op = parts[0]
    args = parts[1] if len(parts) > 1 else ''
    ops = [x.strip() for x in re.split(r',(?![^\[]*\])', args)]
    d = dict(op=op, text=s, dst=[], src=[], kind='other', dpp=False)
    if op.startswith('v_'):
        d['kind'] = 'valu'
        if '_dpp' in op or 'row_' in args or 'quad_perm' in args:
            d['dpp'] = True
        base = op.replace('_dpp', '').replace('_e32', '').replace('_e64', '')
        d['base'] = base
        if base in TRANS:
            d['kind'] = 'trans'
        if base.startswith('v_dot2'):
            d['kind'] = 'dot'
        if base.startswith('v_mfma'):
            d['kind'] = 'mfma'
        if base.startswith('v_cmp'):
            d['dst'] = parse_regs(ops[0]); d['src'] = sum([parse_regs(o) for o in ops[1:]], [])
            if base.startswith('v_cmpx'):
                d['wexec'] = True
        elif base in ('v_readlane_b32', 'v_readfirstlane_b32'):
            d['dst'] = parse_regs(ops[0]); d['src'] = sum([parse_regs(o) for o in ops[1:]], [])
            d['readlane'] = True
        elif base.startswith('v_permlane'):
            d['dst'] = parse_regs(ops[0]) + parse_regs(ops[1]); d['src'] = list(d['dst'])
            d['permlane'] = True
        else:
            d['dst'] = parse_regs(ops[0]); d['src'] = sum([parse_regs(o) for o in ops[1:]], [])
            if base.startswith('v_fmac') or base.startswith('v_dot2c'):
                d['src'] += d['dst']
            if d['dpp']:
                d['src'] += d['dst']
    elif op.startswith('s_'):
        d['kind'] = 'salu'
        if op.startswith('s_load') or op.startswith('s_buffer_load'):
            d['kind'] = 'smem'
        if op in ('s_nop',):
            d['kind'] = 'nop'; d['n'] = int(args) + 1
        if ops and ops[0]:
            d['dst'] = parse_regs(ops[0]); d['src'] = sum([parse_regs(o) for o in ops[1:]], [])
    elif op.startswith('buffer_') or op.startswith('global_') or op.startswith('flat_'):
        d['kind'] = 'vmem'
        regs = sum([parse_regs(o) for o in ops], [])
        if 'load' in op:
            d['dst'] = parse_regs(ops[0]); d['src'] = sum([parse_regs(o) for o in ops[1:]], [])
        else:
            d['src'] = regs
            d['store'] = True
            if 'x4' in op or 'x3' in op:
                d['widestore'] = parse_regs(ops[0] if op.startswith('buffer_') else ops[1])
    elif op.startswith('ds_'):
        d['kind'] = 'ds'
        if 'read' in op or 'permute' in op or 'swizzle' in op:
            d['dst'] = parse_regs(ops[0]); d['src'] = sum([parse_regs(o) for o in ops[1:]], [])
        else:
            d['src'] = sum([parse_regs(o) for o in ops], [])
    return d

def check_hazards(text, verbose=True):
    insts = []
    for ln, line in enumerate(text.split('\n'), 1):
        d = classify(line)
        if d:
            d['ln'] = ln
            insts.append(d)
    problems = []
    n = len(insts)
    for p in insts:
        m = re.search(r'offset:(\d+)', p['text'])
        if m:
            off = int(m.group(1))
            if p['kind'] == 'vmem' and p['op'].startswith('buffer_') and off > 4095:
                problems.append((p['ln'], p['text'], p['ln'], 'MUBUF offset too large', 4095, off))
            if p['kind'] == 'ds' and off > 65535:
                problems.append((p['ln'], p['text'], p['ln'], 'DS offset too large', 65535, off))
    for i, p in enumerate(insts):
        if p['kind'] not in ('valu', 'trans', 'dot', 'mfma', 'vmem'):
            continue
        ws = 0
        for j in range(i + 1, min(n, i + 24)):
            cns = insts[j]
            if cns['kind'] == 'nop':
                ws += cns['n']
                continue
            need = 0
            pd = set(p['dst'])
            vd = set(r for r in pd if r[0] == 'v')
            sd = set(r for r in pd if r[0] == 's')
            cs = set(cns['src']); cd = set(cns['dst'])
            if p['kind'] in ('valu', 'trans', 'dot'):
                if cns.get('dpp') and (vd & cs):
                    need = max(need, 2)
                if cns.get('permlane') and (vd & cs):
                    need = max(need, 2)
                if cns.get('readlane') and (vd & cs):
                    need = max(need, 1)
                if sd and cns['kind'] in ('valu', 'trans', 'dot') and (sd & cs):
                    need = max(need, 2)
                if sd and cns['kind'] == 'vmem' and (sd & cs):
                    need = max(need, 5)
                if cns['kind'] == 'mfma' and (vd & cs):
                    need = max(need, 2)
            if p['kind'] == 'trans' and cns['kind'] in ('valu', 'dot', 'mfma') and (vd & cs):
                need = max(need, 1)
            if p['kind'] == 'dot':
                if cns['kind'] == 'dot' and cns.get('base') == p.get('base'):
                    srcs = cns['src']
                    ab = set(srcs[:2]) if len(srcs) >= 3 else set(srcs)
                    if vd & ab:
                        need = max(need, 3)
                elif cns['kind'] in ('valu', 'trans', 'dot', 'vmem', 'ds', 'mfma') and (vd & (cs | cd)):
                    need = max(need, 3)
            if p['kind'] == 'vmem' and p.get('widestore'):
                wd = set(p['widestore'])
                if cns['kind'] in ('valu', 'trans', 'dot') and (wd & cd):
                    need = max(need, 2)
                elif (wd & cd):
                    need = max(need, 1)
            if need > ws:
                problems.append((p['ln'], p['text'], cns['ln'], cns['text'], need, ws))
            ws += 1
    if verbose:
        for pr in problems:
            print('HAZARD: line %d [%s] -> line %d [%s] need %d have %d' % pr)
    return problems
```

```python
import sys
from asmlib import Asm, check_hazards

NAME = 'sequential_preLN__mha_block_cached__geglu_ffn__decode'

WS_PART = 0x0
WS_PW = 0x100000
WS_H = 0x200000
WS_ACT = 0x201000

LOG2E = 0x3fb8aa3b
SCALE = 0x3db504f3
EPS = 0x3727c5ac
INV512 = 0x3b000000

DPPM = 'row_mask:0xf bank_mask:0xf'


def rnd(a, reg, tmp):
    a(f'v_cvt_pk_bf16_f32 v{tmp}, v{reg}, v{reg}')
    a(f'v_lshlrev_b32 v{reg}, 16, v{tmp}')


def row_allreduce(a, op, reg, rors=(8, 4, 2, 1)):
    for r in rors:
        a('s_nop 1')
        a(f'{op}_dpp v{reg}, v{reg}, v{reg} row_ror:{r} {DPPM}')


def wave_allreduce_sum(a, reg, s0):
    row_allreduce(a, 'v_add_f32', reg)
    a('s_nop 0')
    for i in range(4):
        a(f'v_readlane_b32 s{s0+i}, v{reg}, {16*i}')
    a('s_nop 1')
    a(f'v_mov_b32 v{reg}, s{s0}')
    for i in range(1, 4):
        a(f'v_add_f32 v{reg}, s{s0+i}, v{reg}')


def srd(a, s, lo, hi, size):
    a(f's_mov_b32 s{s}, s{lo}')
    a(f's_mov_b32 s{s+1}, s{hi}')
    a(f's_mov_b32 s{s+2}, {size}')
    a(f's_mov_b32 s{s+3}, 0x00020000')


def srd_off(a, s, lo, hi, soff, size):
    a(f's_add_u32 s{s}, s{lo}, s{soff}')
    a(f's_addc_u32 s{s+1}, s{hi}, 0')
    if isinstance(size, str):
        tot = int(size.split(':')[1])
        a(f's_sub_u32 s{s+2}, {tot}, s{soff}')
    else:
        a(f's_mov_b32 s{s+2}, {size}')
    a(f's_mov_b32 s{s+3}, 0x00020000')


def kernel_desc(name, vgpr, sgpr=102, extra=''):
    acc = ((vgpr + 3) // 4) * 4
    return f'''.amdhsa_kernel {name}
  .amdhsa_next_free_vgpr {vgpr}
  .amdhsa_next_free_sgpr {sgpr}
  .amdhsa_accum_offset {acc}
  .amdhsa_group_segment_fixed_size 0
  .amdhsa_kernarg_size 96
  .amdhsa_user_sgpr_count 2
  .amdhsa_user_sgpr_kernarg_segment_ptr 1
  .amdhsa_system_sgpr_workgroup_id_x 1
{extra}.end_amdhsa_kernel
'''

A_LDS_XN = 0
A_LDS_Q = 2048
A_LDS_ML = 2304
A_LDS_QP = 4096
A_LDS_O = 4096
A_LDS_SIZE = 4096 + 32768


def gen_attn(a, W=16, G=4, NT=' nt'):
    vTid, vL16, vLane, vT = 0, 1, 2, 3
    vX = 4
    vQ = 12
    vAcc = 16
    vM, vL, vT1, vT2 = 24, 25, 26, 27
    vS = 28
    vWin = 60
    nv = vWin + 4 * W
    sW, sH, sC = 14, 15, 3
    SX, SWQ, SK, SV, SWS = 16, 20, 24, 28, 32
    sOff, sTmp, sLog2e = 36, 38, 39
    sR = 40

    a.label('attn_kernel')
    a('s_cmp_ge_u32 s2, 256')
    a('s_cbranch_scc1 A_done')
    a('s_load_dwordx4 s[4:7], s[0:1], 0')
    a('s_load_dwordx4 s[8:11], s[0:1], 16')
    a('s_load_dwordx2 s[12:13], s[0:1], 88')
    a(f'v_and_b32 v{vLane}, 63, v0')
    a(f'v_lshrrev_b32 v{vT}, 6, v0')
    a('s_nop 0')
    a(f'v_readfirstlane_b32 s{sW}, v{vT}')
    a(f's_and_b32 s{sH}, s2, 31')
    a(f's_lshr_b32 s{sC}, s2, 5')
    a(f'v_lshlrev_b32 v{vL16}, 4, v{vLane}')
    a(f's_mov_b32 s{sLog2e}, {LOG2E:#x}')
    a('s_waitcnt lgkmcnt(0)')
    srd(a, SX, 4, 5, 1024)
    a(f's_lshl_b32 s{sTmp}, s{sH}, 8')
    srd_off(a, SWQ, 10, 11, sTmp, 'rem:4194304')
    a(f's_lshl_b32 s{sTmp}, s{sH}, 22')
    a(f's_lshl_b32 s{sOff}, s{sC}, 19')
    a(f's_add_u32 s{sTmp}, s{sTmp}, s{sOff}')
    a(f's_lshl_b32 s{sOff}, s{sW}, 15')
    a(f's_add_u32 s{sTmp}, s{sTmp}, s{sOff}')
    srd_off(a, SK, 6, 7, sTmp, 32768)
    srd_off(a, SV, 8, 9, sTmp, 32768)
    a(f's_lshl_b32 s{sTmp}, s{sH}, 3')
    a(f's_add_u32 s{sTmp}, s{sTmp}, s{sC}')
    a(f's_lshl_b32 s{sTmp}, s{sTmp}, 10')
    a(f's_add_u32 s{sTmp}, s{sTmp}, {WS_PART}')
    srd_off(a, SWS, 12, 13, sTmp, 1024)

    a(f'buffer_load_dwordx4 v[{vX}:{vX+3}], v{vL16}, s[{SX}:{SX+3}], 0 offen')
    a(f'v_lshrrev_b32 v{vT}, 4, v{vLane}')
    a(f'v_lshlrev_b32 v{vT}, 13, v{vT}')
    a(f'v_and_b32 v{vT1}, 15, v{vLane}')
    a(f'v_lshl_add_u32 v{vT}, v{vT1}, 4, v{vT}')
    a(f's_lshl_b32 s{sOff}, s{sW}, 18')
    for i in range(8):
        a(f'buffer_load_dwordx4 v[{vS+4*i}:{vS+4*i+3}], v{vT}, s[{SWQ}:{SWQ+3}], s{sOff} offen')
        if i < 7:
            a(f's_add_u32 s{sOff}, s{sOff}, 0x8000')

    def issue(i):
        slot = i % W
        t = i % 32
        srdn = SK if i < 32 else SV
        if t % 4 == 0:
            a(f's_mov_b32 s{sOff}, {(t // 4) * 4096}')
        a(f'buffer_load_dwordx4 v[{vWin+4*slot}:{vWin+4*slot+3}], v{vL16}, s[{srdn}:{srdn+3}], s{sOff} offen offset:{(t % 4) * 1024}{NT}')

    for i in range(W):
        issue(i)

    vF = vAcc
    a(f's_waitcnt vmcnt({8 + W})')
    for j in range(4):
        a(f'v_lshlrev_b32 v{vF+2*j}, 16, v{vX+j}')
        a(f'v_and_b32 v{vF+2*j+1}, 0xffff0000, v{vX+j}')
    a(f'v_add_f32 v{vT}, v{vF}, v{vF+1}')
    a(f'v_add_f32 v{vT1}, v{vF+2}, v{vF+3}')
    a(f'v_add_f32 v{vT2}, v{vF+4}, v{vF+5}')
    a(f'v_add_f32 v{vM}, v{vF+6}, v{vF+7}')
    a(f'v_add_f32 v{vT}, v{vT}, v{vT1}')
    a(f'v_add_f32 v{vT2}, v{vT2}, v{vM}')
    a(f'v_add_f32 v{vT}, v{vT}, v{vT2}')
    wave_allreduce_sum(a, vT, sR)
    vMean = vM
    a(f'v_mul_f32 v{vMean}, {INV512:#x}, v{vT}')
    vCn = vX
    for e in range(8):
        a(f'v_sub_f32 v{vCn+e}, v{vF+e}, v{vMean}')
    a(f'v_mul_f32 v{vT}, v{vCn}, v{vCn}')
    for e in range(1, 8):
        a(f'v_fmac_f32 v{vT}, v{vCn+e}, v{vCn+e}')
    wave_allreduce_sum(a, vT, sR)
    a(f'v_mul_f32 v{vT}, {INV512:#x}, v{vT}')
    rnd(a, vMean, vT1)
    rnd(a, vT, vT1)
    a(f'v_add_f32 v{vT}, {EPS:#x}, v{vT}')
    rnd(a, vT, vT1)
    a(f'v_sqrt_f32 v{vT1}, v{vT}')
    a('s_nop 0')
    a(f'v_fma_f32 v{vT2}, -v{vT1}, v{vT1}, v{vT}')
    a(f'v_rcp_f32 v{vL}, v{vT1}')
    a('s_nop 0')
    a(f'v_mul_f32 v{vL}, 0.5, v{vL}')
    a(f'v_fma_f32 v{vT1}, v{vT2}, v{vL}, v{vT1}')
    rnd(a, vT1, vT2)
    a(f'v_rcp_f32 v{vL}, v{vT1}')
    for e in range(8):
        a(f'v_sub_f32 v{vCn+e}, v{vF+e}, v{vMean}')
    for e in range(8):
        rnd(a, vCn + e, vT2)
    for e in range(8):
        a(f'v_mul_f32 v{vF+e}, v{vCn+e}, v{vL}')
        a(f'v_fma_f32 v{vT2}, -v{vF+e}, v{vT1}, v{vCn+e}')
        a(f'v_fma_f32 v{vF+e}, v{vT2}, v{vL}, v{vF+e}')
        rnd(a, vF + e, vT2)
    a(f'v_lshlrev_b32 v{vT}, 5, v{vLane}')
    a(f'ds_write_b128 v{vT}, v[{vF}:{vF+3}] offset:{A_LDS_XN}')
    a(f'ds_write_b128 v{vT}, v[{vF+4}:{vF+7}] offset:{A_LDS_XN+16}')
    a(f'v_lshrrev_b32 v{vT1}, 4, v{vLane}')
    a(f'v_lshlrev_b32 v{vT1}, 2, v{vT1}')
    a(f's_lshl_b32 s{sTmp}, s{sW}, 7')
    a(f'v_add_u32 v{vT1}, s{sTmp}, v{vT1}')
    a('s_waitcnt lgkmcnt(0)')
    for i in range(8):
        a(f'ds_read_b32 v{vX+i}, v{vT1} offset:{A_LDS_XN + 16*i}')
    a(f's_waitcnt vmcnt({W}) lgkmcnt(0)')
    for i in range(8):
        for j in range(4):
            wr = vS + 4 * i + j
            a(f'v_lshlrev_b32 v{vT1}, 16, v{wr}')
            a(f'v_and_b32 v{vT2}, 0xffff0000, v{wr}')
            if i == 0:
                a(f'v_mul_f32 v{vAcc+2*j}, v{vX+i}, v{vT1}')
                a(f'v_mul_f32 v{vAcc+2*j+1}, v{vX+i}, v{vT2}')
            else:
                a(f'v_fmac_f32 v{vAcc+2*j}, v{vX+i}, v{vT1}')
                a(f'v_fmac_f32 v{vAcc+2*j+1}, v{vX+i}, v{vT2}')
    a(f's_lshl_b32 s{sTmp}, s{sW}, 11')
    a(f'v_add_u32 v{vT}, s{sTmp}, v{vT}')
    a(f'ds_write_b128 v{vT}, v[{vAcc}:{vAcc+3}] offset:{A_LDS_QP}')
    a(f'ds_write_b128 v{vT}, v[{vAcc+4}:{vAcc+7}] offset:{A_LDS_QP+16}')
    a('s_waitcnt lgkmcnt(0)')
    a('s_barrier')
    a(f's_cmp_ge_u32 s{sW}, 2')
    a('s_cbranch_scc1 A_qdone')
    a(f'v_lshlrev_b32 v{vT}, 2, v0')
    vR = vS
    for b in range(2):
        for i in range(32):
            a(f'ds_read_b32 v{vR+i}, v{vT} offset:{A_LDS_QP + (b*32+i)*512}')
        a('s_waitcnt lgkmcnt(0)')
        for i in range(32):
            if b == 0 and i == 0:
                continue
            if b == 0 and i == 1:
                a(f'v_add_f32 v{vT1}, v{vR}, v{vR+1}')
            else:
                a(f'v_add_f32 v{vT1}, v{vT1}, v{vR+i}')
    a(f'v_cvt_pk_bf16_f32 v{vT1}, v{vT1}, v{vT1}')
    a(f'v_lshlrev_b32 v{vT2}, 1, v0')
    a(f'ds_write_b16 v{vT2}, v{vT1} offset:{A_LDS_Q}')
    a('s_waitcnt lgkmcnt(0)')
    a.label('A_qdone')
    a('s_barrier')
    a(f'v_and_b32 v{vT}, 15, v{vLane}')
    a(f'v_lshlrev_b32 v{vT}, 4, v{vT}')
    a(f'ds_read_b128 v[{vQ}:{vQ+3}], v{vT} offset:{A_LDS_Q}')
    a('s_waitcnt lgkmcnt(0)')

    def wait_for(g):
        outstanding = min(W, 64 - g)
        a(f's_waitcnt vmcnt({max(0, outstanding - G)})')

    for g in range(0, 32, G):
        wait_for(g)
        tiles = list(range(g, g + G))
        for j in range(4):
            for t in tiles:
                kr = vWin + 4 * (t % W) + j
                if j == 0:
                    a(f'v_dot2_f32_bf16 v{vS+t}, v{kr}, v{vQ+j}, 0')
                else:
                    a(f'v_dot2_f32_bf16 v{vS+t}, v{kr}, v{vQ+j}, v{vS+t}')
        for i in range(g + W, g + W + G):
            if i < 64:
                issue(i)
        for r in (8, 4, 2, 1):
            for t in tiles:
                a(f'v_add_f32_dpp v{vS+t}, v{vS+t}, v{vS+t} row_ror:{r} {DPPM}')
        for t in range(g, g + G, 2):
            sa, sb = vS + t, vS + t + 1
            a(f'v_cvt_pk_bf16_f32 v{vT}, v{sa}, v{sb}')
            a(f'v_lshlrev_b32 v{sa}, 16, v{vT}')
            a(f'v_and_b32 v{sb}, 0xffff0000, v{vT}')
            a(f'v_mul_f32 v{sa}, {SCALE:#x}, v{sa}')
            a(f'v_mul_f32 v{sb}, {SCALE:#x}, v{sb}')
            a(f'v_cvt_pk_bf16_f32 v{vT}, v{sa}, v{sb}')
            a(f'v_lshlrev_b32 v{sa}, 16, v{vT}')
            a(f'v_and_b32 v{sb}, 0xffff0000, v{vT}')
    a(f'v_max3_f32 v{vM}, v{vS}, v{vS+1}, v{vS+2}')
    for t in range(3, 31, 2):
        a(f'v_max3_f32 v{vM}, v{vM}, v{vS+t}, v{vS+t+1}')
    a(f'v_max_f32 v{vM}, v{vM}, v{vS+31}')
    a(f'v_mul_f32 v{vM}, s{sLog2e}, v{vM}')
    for t in range(32):
        a(f'v_fma_f32 v{vS+t}, v{vS+t}, s{sLog2e}, -v{vM}')
    for t in range(32):
        a(f'v_exp_f32 v{vS+t}, v{vS+t}')
    a(f'v_add_f32 v{vL}, v{vS}, v{vS+1}')
    for t in range(2, 32):
        a(f'v_add_f32 v{vL}, v{vL}, v{vS+t}')
    for g in range(32, 64, G):
        wait_for(g)
        for t in range(g, g + G):
            tt = t - 32
            for j in range(4):
                vr = vWin + 4 * (t % W) + j
                a(f'v_lshlrev_b32 v{vT1}, 16, v{vr}')
                a(f'v_and_b32 v{vT2}, 0xffff0000, v{vr}')
                if tt == 0:
                    a(f'v_mul_f32 v{vAcc+2*j}, v{vS+tt}, v{vT1}')
                    a(f'v_mul_f32 v{vAcc+2*j+1}, v{vS+tt}, v{vT2}')
                else:
                    a(f'v_fmac_f32 v{vAcc+2*j}, v{vS+tt}, v{vT1}')
                    a(f'v_fmac_f32 v{vAcc+2*j+1}, v{vS+tt}, v{vT2}')
        for i in range(g + W, g + W + G):
            if i < 64:
                issue(i)
    a(f'v_mov_b32 v{vT}, v{vM}')
    a(f'v_mov_b32 v{vT1}, v{vM}')
    a('s_nop 1')
    a(f'v_permlane32_swap_b32 v{vT}, v{vT1}')
    a('s_nop 1')
    a(f'v_max_f32 v{vT}, v{vT}, v{vT1}')
    a(f'v_mov_b32 v{vT1}, v{vT}')
    a('s_nop 1')
    a(f'v_permlane16_swap_b32 v{vT}, v{vT1}')
    a('s_nop 1')
    a(f'v_max_f32 v{vT}, v{vT}, v{vT1}')
    a(f'v_sub_f32 v{vT2}, v{vM}, v{vT}')
    a(f'v_exp_f32 v{vT2}, v{vT2}')
    a('s_nop 0')
    regs = [vAcc + j for j in range(8)] + [vL]
    for r in regs:
        a(f'v_mul_f32 v{r}, v{vT2}, v{r}')
    tmp = [vS + j for j in range(9)]
    for swap in ('v_permlane32_swap_b32', 'v_permlane16_swap_b32'):
        for r, tm in zip(regs, tmp):
            a(f'v_mov_b32 v{tm}, v{r}')
        a('s_nop 1')
        for r, tm in zip(regs, tmp):
            a(f'{swap} v{r}, v{tm}')
        a('s_nop 1')
        for r, tm in zip(regs, tmp):
            a(f'v_add_f32 v{r}, v{r}, v{tm}')
    a(f'v_mov_b32 v{vT1}, v{vL}')
    a(f'v_mov_b32 v{vT2}, v{vT1}')
    a(f'v_mov_b32 v{vT1}, v{vT}')
    a(f'v_lshlrev_b32 v{vT}, 5, v{vLane}')
    a(f's_lshl_b32 s{sTmp}, s{sW}, 9')
    a(f'v_add_u32 v{vT}, s{sTmp}, v{vT}')
    a('s_mov_b64 exec, 0xffff')
    a(f'ds_write_b128 v{vT}, v[{vAcc}:{vAcc+3}] offset:{A_LDS_O}')
    a(f'ds_write_b128 v{vT}, v[{vAcc+4}:{vAcc+7}] offset:{A_LDS_O+16}')
    a(f's_lshl_b32 s{sTmp}, s{sW}, 3')
    a(f'v_mov_b32 v{vT}, s{sTmp}')
    a(f'ds_write_b64 v{vT}, v[{vT1}:{vT2}] offset:{A_LDS_ML}')
    a('s_mov_b64 exec, -1')
    a('s_waitcnt lgkmcnt(0)')
    a('s_barrier')
    a(f's_cmp_ge_u32 s{sW}, 2')
    a('s_cbranch_scc1 A_done')
    vML = vS
    vO = vWin
    a(f'v_mov_b32 v{vT}, 0')
    for w in range(16):
        a(f'ds_read_b64 v[{vML+2*w}:{vML+2*w+1}], v{vT} offset:{A_LDS_ML + 8*w}')
    a(f'v_lshlrev_b32 v{vT}, 2, v0')
    for w in range(16):
        a(f'ds_read_b32 v{vO+w}, v{vT} offset:{A_LDS_O + 512*w}')
    a('s_waitcnt lgkmcnt(0)')
    a(f'v_max3_f32 v{vM}, v{vML}, v{vML+2}, v{vML+4}')
    for w in range(3, 15, 2):
        a(f'v_max3_f32 v{vM}, v{vM}, v{vML+2*w}, v{vML+2*w+2}')
    a(f'v_max_f32 v{vM}, v{vM}, v{vML+30}')
    for w in range(16):
        a(f'v_sub_f32 v{vML+2*w}, v{vML+2*w}, v{vM}')
    for w in range(16):
        a(f'v_exp_f32 v{vML+2*w}, v{vML+2*w}')
    a('s_nop 0')
    a(f'v_mul_f32 v{vL}, v{vML}, v{vML+1}')
    a(f'v_mul_f32 v{vAcc}, v{vML}, v{vO}')
    for w in range(1, 16):
        a(f'v_fmac_f32 v{vL}, v{vML+2*w}, v{vML+2*w+1}')
        a(f'v_fmac_f32 v{vAcc}, v{vML+2*w}, v{vO+w}')
    a(f'buffer_store_dword v{vAcc}, v{vT}, s[{SWS}:{SWS+3}], 0 offen')
    a(f'v_mov_b32 v{vT1}, v{vM}')
    a(f'v_mov_b32 v{vT2}, v{vL}')
    a(f'v_mov_b32 v{vT}, 512')
    a('s_mov_b64 exec, 1')
    a(f'buffer_store_dwordx2 v[{vT1}:{vT2}], v{vT}, s[{SWS}:{SWS+3}], 0 offen')
    a('s_mov_b64 exec, -1')
    a.label('A_done')
    a('s_endpgm')
    return nv


def gen_wo(a):
    vLane, vT, vT1, vT2 = 1, 2, 3, 4
    vWt = 8
    vOp = 24
    vMLp = 32
    vAcc = 48
    vOr = 56
    sW = 14; sRr = 15; sCc = 3
    SWO, SP, SPW = 16, 20, 24
    sTmp, sOff = 28, 29
    LDS_O = 0; LDS_P = 1024
    a.label('wo_kernel')
    a('s_cmp_ge_u32 s2, 256')
    a('s_cbranch_scc1 W_done')
    a('s_load_dwordx2 s[4:5], s[0:1], 32')
    a('s_load_dwordx2 s[6:7], s[0:1], 88')
    a(f'v_and_b32 v{vLane}, 63, v0')
    a(f'v_lshrrev_b32 v{vT}, 6, v0')
    a('s_nop 0')
    a(f'v_readfirstlane_b32 s{sW}, v{vT}')
    a(f's_lshr_b32 s{sRr}, s2, 4')
    a(f's_and_b32 s{sCc}, s2, 15')
    a('s_waitcnt lgkmcnt(0)')
    a(f's_lshl_b32 s{sTmp}, s{sRr}, 18')
    a(f's_lshl_b32 s{sOff}, s{sCc}, 6')
    a(f's_add_u32 s{sTmp}, s{sTmp}, s{sOff}')
    srd_off(a, SWO, 4, 5, sTmp, 'rem:4194304')
    a(f's_lshl_b32 s{sTmp}, s{sRr}, 14')
    a(f's_add_u32 s{sTmp}, s{sTmp}, {WS_PART}')
    srd_off(a, SP, 6, 7, sTmp, 16384)
    a(f's_lshl_b32 s{sTmp}, s{sRr}, 11')
    a(f's_lshl_b32 s{sOff}, s{sCc}, 7')
    a(f's_add_u32 s{sTmp}, s{sTmp}, s{sOff}')
    a(f's_add_u32 s{sTmp}, s{sTmp}, {WS_PW}')
    srd_off(a, SPW, 6, 7, sTmp, 128)
    a(f'v_lshrrev_b32 v{vT}, 2, v{vLane}')
    a(f'v_lshlrev_b32 v{vT}, 10, v{vT}')
    a(f'v_and_b32 v{vT1}, 3, v{vLane}')
    a(f'v_lshl_add_u32 v{vT}, v{vT1}, 4, v{vT}')
    a(f's_lshl_b32 s{sOff}, s{sW}, 16')
    for i in range(4):
        a(f'buffer_load_dwordx4 v[{vWt+4*i}:{vWt+4*i+3}], v{vT}, s[{SWO}:{SWO+3}], s{sOff} offen')
        if i < 3:
            a(f's_add_u32 s{sOff}, s{sOff}, 0x4000')
    a(f'v_lshrrev_b32 v{vT}, 7, v0')
    a(f'v_lshlrev_b32 v{vT}, 13, v{vT}')
    a(f'v_and_b32 v{vT1}, 127, v0')
    a(f'v_lshl_add_u32 v{vT1}, v{vT1}, 2, v{vT}')
    a(f'v_add_u32 v{vT2}, 512, v{vT}')
    a(f's_mov_b32 s{sOff}, 4096')
    for c8 in range(8):
        so = '0' if c8 < 4 else f's{sOff}'
        a(f'buffer_load_dword v{vOp+c8}, v{vT1}, s[{SP}:{SP+3}], {so} offen offset:{(c8%4)*1024}')
    for c8 in range(8):
        so = '0' if c8 < 4 else f's{sOff}'
        a(f'buffer_load_dwordx2 v[{vMLp+2*c8}:{vMLp+2*c8+1}], v{vT2}, s[{SP}:{SP+3}], {so} offen offset:{(c8%4)*1024}')
    a('s_waitcnt vmcnt(0)')
    a(f'v_max3_f32 v{vT}, v{vMLp}, v{vMLp+2}, v{vMLp+4}')
    a(f'v_max3_f32 v{vT}, v{vT}, v{vMLp+6}, v{vMLp+8}')
    a(f'v_max3_f32 v{vT}, v{vT}, v{vMLp+10}, v{vMLp+12}')
    a(f'v_max_f32 v{vT}, v{vT}, v{vMLp+14}')
    for c8 in range(8):
        a(f'v_sub_f32 v{vMLp+2*c8}, v{vMLp+2*c8}, v{vT}')
    for c8 in range(8):
        a(f'v_exp_f32 v{vMLp+2*c8}, v{vMLp+2*c8}')
    a('s_nop 0')
    a(f'v_mul_f32 v{vT}, v{vMLp}, v{vMLp+1}')
    a(f'v_mul_f32 v{vT1}, v{vMLp}, v{vOp}')
    for c8 in range(1, 8):
        a(f'v_fmac_f32 v{vT}, v{vMLp+2*c8}, v{vMLp+2*c8+1}')
        a(f'v_fmac_f32 v{vT1}, v{vMLp+2*c8}, v{vOp+c8}')
    a(f'v_rcp_f32 v{vT2}, v{vT}')
    a('s_nop 0')
    a(f'v_mul_f32 v{vOp}, v{vT1}, v{vT2}')
    a(f'v_fma_f32 v{vOp+1}, -v{vOp}, v{vT}, v{vT1}')
    a(f'v_fma_f32 v{vOp}, v{vOp+1}, v{vT2}, v{vOp}')
    rnd(a, vOp, vT)
    a(f'v_lshlrev_b32 v{vT}, 2, v0')
    a(f'ds_write_b32 v{vT}, v{vOp} offset:{LDS_O}')
    a('s_waitcnt lgkmcnt(0)')
    a('s_barrier')
    a(f'v_lshrrev_b32 v{vT}, 2, v{vLane}')
    a(f'v_lshlrev_b32 v{vT}, 2, v{vT}')
    a(f's_lshl_b32 s{sTmp}, s{sW}, 8')
    a(f'v_add_u32 v{vT}, s{sTmp}, v{vT}')
    for i in range(4):
        a(f'ds_read_b32 v{vOr+i}, v{vT} offset:{LDS_O + 64*i}')
    a('s_waitcnt lgkmcnt(0)')
    for i in range(4):
        for j in range(4):
            wr = vWt + 4 * i + j
            a(f'v_lshlrev_b32 v{vT1}, 16, v{wr}')
            a(f'v_and_b32 v{vT2}, 0xffff0000, v{wr}')
            if i == 0:
                a(f'v_mul_f32 v{vAcc+2*j}, v{vOr+i}, v{vT1}')
                a(f'v_mul_f32 v{vAcc+2*j+1}, v{vOr+i}, v{vT2}')
            else:
                a(f'v_fmac_f32 v{vAcc+2*j}, v{vOr+i}, v{vT1}')
                a(f'v_fmac_f32 v{vAcc+2*j+1}, v{vOr+i}, v{vT2}')
    a('s_nop 1')
    for r in (4, 8):
        for j in range(8):
            a(f'v_add_f32_dpp v{vAcc+j}, v{vAcc+j}, v{vAcc+j} row_ror:{r} {DPPM}')
    a(f'v_lshrrev_b32 v{vT}, 4, v{vLane}')
    a(f'v_lshlrev_b32 v{vT}, 7, v{vT}')
    a(f'v_and_b32 v{vT1}, 3, v{vLane}')
    a(f'v_lshl_add_u32 v{vT}, v{vT1}, 5, v{vT}')
    a(f's_lshl_b32 s{sTmp}, s{sW}, 9')
    a(f'v_add_u32 v{vT}, s{sTmp}, v{vT}')
    a('s_mov_b32 s30, 0x000f000f')
    a('s_mov_b32 s31, 0x000f000f')
    a('s_mov_b64 exec, s[30:31]')
    a(f'ds_write_b128 v{vT}, v[{vAcc}:{vAcc+3}] offset:{LDS_P}')
    a(f'ds_write_b128 v{vT}, v[{vAcc+4}:{vAcc+7}] offset:{LDS_P+16}')
    a('s_mov_b64 exec, -1')
    a('s_waitcnt lgkmcnt(0)')
    a('s_barrier')
    a(f's_cmp_ge_u32 s{sW}, 1')
    a('s_cbranch_scc1 W_done')
    a('s_mov_b32 exec_lo, -1')
    a('s_mov_b32 exec_hi, 0')
    a(f'v_lshlrev_b32 v{vT}, 2, v0')
    for i in range(16):
        a(f'ds_read_b32 v{vMLp+i}, v{vT} offset:{LDS_P + 128*i}')
    a('s_waitcnt lgkmcnt(0)')
    a(f'v_add_f32 v{vT1}, v{vMLp}, v{vMLp+1}')
    for i in range(2, 16):
        a(f'v_add_f32 v{vT1}, v{vT1}, v{vMLp+i}')
    a(f'buffer_store_dword v{vT1}, v{vT}, s[{SPW}:{SPW+3}], 0 offen')
    a.label('W_done')
    a('s_endpgm')
    return 60


def gen_geglu(a):
    vLane, vT, vT1, vT2, vT3 = 1, 2, 3, 4, 5
    vH0, vH1 = 6, 7
    vPW = 8
    vWg = 40
    vWu = 72
    vHn = 104
    vAg = 112
    vAu = 120
    vMean, vVar = 8, 9
    sW = 14
    SG, SU, SPW, SX, SH, SA = 16, 20, 24, 28, 32, 36
    sTmp, sOff, sR = 40, 41, 44
    LDS_R = 0
    LDS_HN = 64
    LDS_P = 64 + 2048
    a.label('geglu_kernel')
    a('s_cmp_ge_u32 s2, 56')
    a('s_cbranch_scc1 G_done')
    a('s_load_dwordx2 s[4:5], s[0:1], 0')
    a('s_load_dwordx4 s[8:11], s[0:1], 48')
    a('s_load_dwordx2 s[6:7], s[0:1], 88')
    a(f'v_and_b32 v{vLane}, 63, v0')
    a(f'v_lshrrev_b32 v{vT}, 6, v0')
    a('s_nop 0')
    a(f'v_readfirstlane_b32 s{sW}, v{vT}')
    a('s_waitcnt lgkmcnt(0)')
    a(f's_lshl_b32 s{sTmp}, s2, 6')
    srd_off(a, SG, 8, 9, sTmp, 'rem:1835008')
    srd_off(a, SU, 10, 11, sTmp, 'rem:1835008')
    a(f's_mov_b32 s{sTmp}, {WS_PW}')
    srd_off(a, SPW, 6, 7, sTmp, 32768)
    srd(a, SX, 4, 5, 1024)
    a(f's_mov_b32 s{sTmp}, {WS_H}')
    srd_off(a, SH, 6, 7, sTmp, 2048)
    a(f's_lshl_b32 s{sTmp}, s2, 6')
    a(f's_add_u32 s{sTmp}, s{sTmp}, {WS_ACT}')
    srd_off(a, SA, 6, 7, sTmp, 64)
    a(f'v_lshlrev_b32 v{vT}, 3, v0')
    for r in range(16):
        a(f'buffer_load_dwordx2 v[{vPW+2*r}:{vPW+2*r+1}], v{vT}, s[{SPW}:{SPW+3}], 0 offen offset:{(r%2)*2048}')
        if r % 2 == 1 and r < 15:
            a(f'v_add_u32 v{vT}, 4096, v{vT}')
    a(f'v_lshlrev_b32 v{vT1}, 2, v0')
    a(f'buffer_load_dword v{vT3}, v{vT1}, s[{SX}:{SX+3}], 0 offen')
    a(f'v_lshrrev_b32 v{vT}, 2, v{vLane}')
    a(f'v_mul_u32_u24 v{vT}, 3584, v{vT}')
    a(f'v_and_b32 v{vT1}, 3, v{vLane}')
    a(f'v_lshl_add_u32 v{vT}, v{vT1}, 4, v{vT}')
    a(f's_mul_i32 s{sOff}, s{sW}, {128*3584}')
    for i in range(8):
        a(f'buffer_load_dwordx4 v[{vWg+4*i}:{vWg+4*i+3}], v{vT}, s[{SG}:{SG+3}], s{sOff} offen')
        a(f'buffer_load_dwordx4 v[{vWu+4*i}:{vWu+4*i+3}], v{vT}, s[{SU}:{SU+3}], s{sOff} offen')
        if i < 7:
            a(f's_add_u32 s{sOff}, s{sOff}, {16*3584}')
    a('s_waitcnt vmcnt(16)')
    a(f'v_add_f32 v{vH0}, v{vPW}, v{vPW+2}')
    a(f'v_add_f32 v{vH1}, v{vPW+1}, v{vPW+3}')
    for r in range(2, 16):
        a(f'v_add_f32 v{vH0}, v{vH0}, v{vPW+2*r}')
        a(f'v_add_f32 v{vH1}, v{vH1}, v{vPW+2*r+1}')
    rnd(a, vH0, vT)
    rnd(a, vH1, vT)
    a(f'v_lshlrev_b32 v{vT1}, 16, v{vT3}')
    a(f'v_and_b32 v{vT2}, 0xffff0000, v{vT3}')
    a(f'v_add_f32 v{vH0}, v{vT1}, v{vH0}')
    a(f'v_add_f32 v{vH1}, v{vT2}, v{vH1}')
    rnd(a, vH0, vT)
    rnd(a, vH1, vT)
    a('s_cmp_lg_u32 s2, 0')
    a('s_cbranch_scc1 G_noh')
    a(f'v_lshlrev_b32 v{vT1}, 3, v0')
    a(f'buffer_store_dwordx2 v[{vH0}:{vH1}], v{vT1}, s[{SH}:{SH+3}], 0 offen')
    a.label('G_noh')
    a(f'v_add_f32 v{vT}, v{vH0}, v{vH1}')
    wave_allreduce_sum(a, vT, sR)
    a(f'v_lshlrev_b32 v{vT1}, 2, v{vLane}')
    a(f's_lshl_b32 s{sTmp}, s{sW}, 2')
    a(f'v_mov_b32 v{vT1}, s{sTmp}')
    a(f'ds_write_b32 v{vT1}, v{vT} offset:{LDS_R}')
    a('s_waitcnt lgkmcnt(0)')
    a('s_barrier')
    a(f'v_mov_b32 v{vT1}, 0')
    a(f'ds_read_b128 v[{vPW}:{vPW+3}], v{vT1} offset:{LDS_R}')
    a('s_waitcnt lgkmcnt(0)')
    a(f'v_add_f32 v{vT}, v{vPW}, v{vPW+1}')
    a(f'v_add_f32 v{vT1}, v{vPW+2}, v{vPW+3}')
    a(f'v_add_f32 v{vT}, v{vT}, v{vT1}')
    a(f'v_mul_f32 v{vMean}, {INV512:#x}, v{vT}')
    a(f'v_sub_f32 v{vT1}, v{vH0}, v{vMean}')
    a(f'v_sub_f32 v{vT2}, v{vH1}, v{vMean}')
    a(f'v_mul_f32 v{vT}, v{vT1}, v{vT1}')
    a(f'v_fmac_f32 v{vT}, v{vT2}, v{vT2}')
    wave_allreduce_sum(a, vT, sR)
    a(f'v_mov_b32 v{vT1}, s{sTmp}')
    a(f'ds_write_b32 v{vT1}, v{vT} offset:{LDS_R+16}')
    a('s_waitcnt lgkmcnt(0)')
    a('s_barrier')
    a(f'v_mov_b32 v{vT1}, 0')
    a(f'ds_read_b128 v[{vPW+4}:{vPW+7}], v{vT1} offset:{LDS_R+16}')
    a('s_waitcnt lgkmcnt(0)')
    a(f'v_add_f32 v{vT}, v{vPW+4}, v{vPW+5}')
    a(f'v_add_f32 v{vT1}, v{vPW+6}, v{vPW+7}')
    a(f'v_add_f32 v{vT}, v{vT}, v{vT1}')
    a(f'v_mul_f32 v{vVar}, {INV512:#x}, v{vT}')
    rnd(a, vMean, vT)
    rnd(a, vVar, vT)
    a(f'v_add_f32 v{vVar}, {EPS:#x}, v{vVar}')
    rnd(a, vVar, vT)
    a(f'v_sqrt_f32 v{vT1}, v{vVar}')
    a('s_nop 0')
    a(f'v_fma_f32 v{vT2}, -v{vT1}, v{vT1}, v{vVar}')
    a(f'v_rcp_f32 v{vT3}, v{vT1}')
    a('s_nop 0')
    a(f'v_mul_f32 v{vT3}, 0.5, v{vT3}')
    a(f'v_fma_f32 v{vT1}, v{vT2}, v{vT3}, v{vT1}')
    rnd(a, vT1, vT2)
    a(f'v_rcp_f32 v{vT3}, v{vT1}')
    for (h, o) in ((vH0, 10), (vH1, 11)):
        a(f'v_sub_f32 v{o}, v{h}, v{vMean}')
        rnd(a, o, vT2)
        a(f'v_mul_f32 v12, v{o}, v{vT3}')
        a(f'v_fma_f32 v13, -v12, v{vT1}, v{o}')
        a(f'v_fma_f32 v{o}, v13, v{vT3}, v12')
        rnd(a, o, vT2)
    a(f'v_lshlrev_b32 v{vT}, 3, v0')
    a(f'ds_write_b64 v{vT}, v[10:11] offset:{LDS_HN}')
    a('s_waitcnt lgkmcnt(0)')
    a('s_barrier')
    a(f'v_lshrrev_b32 v{vT}, 2, v{vLane}')
    a(f'v_lshlrev_b32 v{vT}, 2, v{vT}')
    a(f's_lshl_b32 s{sTmp}, s{sW}, 9')
    a(f'v_add_u32 v{vT}, s{sTmp}, v{vT}')
    for i in range(8):
        a(f'ds_read_b32 v{vHn+i}, v{vT} offset:{LDS_HN + 64*i}')
    a('s_waitcnt vmcnt(0) lgkmcnt(0)')
    for (vw, vacc) in ((vWg, vAg), (vWu, vAu)):
        for i in range(8):
            for j in range(4):
                wr = vw + 4 * i + j
                a(f'v_lshlrev_b32 v{vT1}, 16, v{wr}')
                a(f'v_and_b32 v{vT2}, 0xffff0000, v{wr}')
                if i == 0:
                    a(f'v_mul_f32 v{vacc+2*j}, v{vHn+i}, v{vT1}')
                    a(f'v_mul_f32 v{vacc+2*j+1}, v{vHn+i}, v{vT2}')
                else:
                    a(f'v_fmac_f32 v{vacc+2*j}, v{vHn+i}, v{vT1}')
                    a(f'v_fmac_f32 v{vacc+2*j+1}, v{vHn+i}, v{vT2}')
    a('s_nop 1')
    for r in (4, 8):
        for j in range(16):
            a(f'v_add_f32_dpp v{vAg+j}, v{vAg+j}, v{vAg+j} row_ror:{r} {DPPM}')
    a(f'v_lshrrev_b32 v{vT}, 4, v{vLane}')
    a(f'v_lshlrev_b32 v{vT}, 8, v{vT}')
    a(f'v_and_b32 v{vT1}, 3, v{vLane}')
    a(f'v_lshl_add_u32 v{vT}, v{vT1}, 5, v{vT}')
    a(f's_lshl_b32 s{sTmp}, s{sW}, 10')
    a(f'v_add_u32 v{vT}, s{sTmp}, v{vT}')
    a('s_mov_b32 s42, 0x000f000f')
    a('s_mov_b32 s43, 0x000f000f')
    a('s_mov_b64 exec, s[42:43]')
    a(f'ds_write_b128 v{vT}, v[{vAg}:{vAg+3}] offset:{LDS_P}')
    a(f'ds_write_b128 v{vT}, v[{vAg+4}:{vAg+7}] offset:{LDS_P+16}')
    a(f'ds_write_b128 v{vT}, v[{vAu}:{vAu+3}] offset:{LDS_P+128}')
    a(f'ds_write_b128 v{vT}, v[{vAu+4}:{vAu+7}] offset:{LDS_P+144}')
    a('s_mov_b64 exec, -1')
    a('s_waitcnt lgkmcnt(0)')
    a('s_barrier')
    a(f's_cmp_ge_u32 s{sW}, 1')
    a('s_cbranch_scc1 G_done')
    a('s_mov_b32 exec_lo, -1')
    a('s_mov_b32 exec_hi, 0')
    a(f'v_lshlrev_b32 v{vT}, 2, v0')
    for i in range(16):
        a(f'ds_read_b32 v{vWg+i}, v{vT} offset:{LDS_P + 256*i}')
        a(f'ds_read_b32 v{vWu+i}, v{vT} offset:{LDS_P + 256*i + 128}')
    a('s_waitcnt lgkmcnt(0)')
    vG, vU = 10, 11
    a(f'v_add_f32 v{vG}, v{vWg}, v{vWg+1}')
    a(f'v_add_f32 v{vU}, v{vWu}, v{vWu+1}')
    for i in range(2, 16):
        a(f'v_add_f32 v{vG}, v{vG}, v{vWg+i}')
        a(f'v_add_f32 v{vU}, v{vU}, v{vWu+i}')
    rnd(a, vG, vT1)
    rnd(a, vU, vT1)
    a(f'v_mul_f32 v12, v{vG}, v{vG}')
    a(f'v_mul_f32 v12, v12, v{vG}')
    a(f'v_mov_b32 v13, 0x3d372713')
    a(f'v_fma_f32 v12, v12, v13, v{vG}')
    a(f'v_mul_f32 v12, 0x3f4c422a, v12')
    a(f'v_mul_f32 v12, 0x4038aa3b, v12')
    a(f'v_exp_f32 v12, v12')
    a('s_nop 0')
    a(f'v_add_f32 v12, 1.0, v12')
    a(f'v_rcp_f32 v13, v12')
    a('s_nop 0')
    a(f'v_fma_f32 v14, -v12, v13, 1.0')
    a(f'v_fma_f32 v13, v14, v13, v13')
    a(f'v_fma_f32 v13, v13, -2.0, 1.0')
    a(f'v_add_f32 v13, 1.0, v13')
    a(f'v_mul_f32 v12, 0.5, v{vG}')
    a(f'v_mul_f32 v12, v12, v13')
    rnd(a, 12, vT1)
    a(f'v_mul_f32 v12, v12, v{vU}')
    a(f'v_cvt_pk_bf16_f32 v12, v12, v12')
    a(f'v_lshlrev_b32 v{vT}, 1, v0')
    a(f'buffer_store_short v12, v{vT}, s[{SA}:{SA+3}], 0 offen')
    a.label('G_done')
    a('s_endpgm')
    return 128


def gen_down(a):
    vLane, vT, vT1, vT2 = 1, 2, 3, 4
    vAct = 8
    vWd = 16
    vAcc = 44
    sW = 14
    SD, SA, SH, SO = 16, 20, 24, 28
    sTmp, sOff = 32, 33
    LDS_P = 0
    a.label('down_kernel')
    a('s_cmp_ge_u32 s2, 32')
    a('s_cbranch_scc1 D_done')
    a('s_load_dwordx4 s[4:7], s[0:1], 64')
    a('s_load_dwordx2 s[8:9], s[0:1], 88')
    a(f'v_and_b32 v{vLane}, 63, v0')
    a(f'v_lshrrev_b32 v{vT}, 6, v0')
    a('s_nop 0')
    a(f'v_readfirstlane_b32 s{sW}, v{vT}')
    a('s_waitcnt lgkmcnt(0)')
    a(f's_lshl_b32 s{sTmp}, s2, 5')
    srd_off(a, SD, 4, 5, sTmp, 'rem:1835008')
    a(f's_mov_b32 s{sTmp}, {WS_ACT}')
    srd_off(a, SA, 8, 9, sTmp, 3584)
    a(f's_lshl_b32 s{sTmp}, s2, 6')
    a(f's_add_u32 s{sTmp}, s{sTmp}, {WS_H}')
    srd_off(a, SH, 8, 9, sTmp, 64)
    a(f's_lshl_b32 s{sTmp}, s2, 5')
    srd_off(a, SO, 6, 7, sTmp, 32)
    a(f'v_lshrrev_b32 v{vT}, 1, v{vLane}')
    a(f'v_lshlrev_b32 v{vT1}, 1, v{vT}')
    a(f's_mul_i32 s{sOff}, s{sW}, 448')
    for i in range(7):
        a(f'buffer_load_ushort v{vAct+i}, v{vT1}, s[{SA}:{SA+3}], s{sOff} offen offset:{64*i}')
    a(f'v_lshlrev_b32 v{vT}, 10, v{vT}')
    a(f'v_and_b32 v{vT1}, 1, v{vLane}')
    a(f'v_lshl_add_u32 v{vT}, v{vT1}, 4, v{vT}')
    a(f's_mul_i32 s{sOff}, s{sW}, {224*1024}')
    for i in range(7):
        a(f'buffer_load_dwordx4 v[{vWd+4*i}:{vWd+4*i+3}], v{vT}, s[{SD}:{SD+3}], s{sOff} offen')
        if i < 6:
            a(f's_add_u32 s{sOff}, s{sOff}, {32*1024}')
    a('s_waitcnt vmcnt(0)')
    for i in range(7):
        a(f'v_lshlrev_b32 v{vAct+i}, 16, v{vAct+i}')
    for i in range(7):
        for j in range(4):
            wr = vWd + 4 * i + j
            a(f'v_lshlrev_b32 v{vT1}, 16, v{wr}')
            a(f'v_and_b32 v{vT2}, 0xffff0000, v{wr}')
            if i == 0:
                a(f'v_mul_f32 v{vAcc+2*j}, v{vAct+i}, v{vT1}')
                a(f'v_mul_f32 v{vAcc+2*j+1}, v{vAct+i}, v{vT2}')
            else:
                a(f'v_fmac_f32 v{vAcc+2*j}, v{vAct+i}, v{vT1}')
                a(f'v_fmac_f32 v{vAcc+2*j+1}, v{vAct+i}, v{vT2}')
    a('s_nop 1')
    for r in (2, 4, 8):
        for j in range(8):
            a(f'v_add_f32_dpp v{vAcc+j}, v{vAcc+j}, v{vAcc+j} row_ror:{r} {DPPM}')
    a(f'v_lshrrev_b32 v{vT}, 4, v{vLane}')
    a(f'v_lshlrev_b32 v{vT}, 6, v{vT}')
    a(f'v_and_b32 v{vT1}, 1, v{vLane}')
    a(f'v_lshl_add_u32 v{vT}, v{vT1}, 5, v{vT}')
    a(f's_lshl_b32 s{sTmp}, s{sW}, 8')
    a(f'v_add_u32 v{vT}, s{sTmp}, v{vT}')
    a('s_mov_b32 s34, 0x00030003')
    a('s_mov_b32 s35, 0x00030003')
    a('s_mov_b64 exec, s[34:35]')
    a(f'ds_write_b128 v{vT}, v[{vAcc}:{vAcc+3}] offset:{LDS_P}')
    a(f'ds_write_b128 v{vT}, v[{vAcc+4}:{vAcc+7}] offset:{LDS_P+16}')
    a('s_mov_b64 exec, -1')
    a('s_waitcnt lgkmcnt(0)')
    a('s_barrier')
    a(f's_cmp_ge_u32 s{sW}, 1')
    a('s_cbranch_scc1 D_done')
    a('s_mov_b64 exec, 0xffff')
    a(f'v_lshlrev_b32 v{vT}, 2, v0')
    a(f'buffer_load_dword v{vT2}, v{vT}, s[{SH}:{SH+3}], 0 offen')
    for i in range(32):
        a(f'ds_read_b32 v{vWd+i}, v{vT} offset:{LDS_P + 64*i}')
    a('s_waitcnt lgkmcnt(0)')
    a(f'v_add_f32 v{vT1}, v{vWd}, v{vWd+1}')
    for i in range(2, 32):
        a(f'v_add_f32 v{vT1}, v{vT1}, v{vWd+i}')
    rnd(a, vT1, vAcc)
    a('s_waitcnt vmcnt(0)')
    a(f'v_add_f32 v{vT1}, v{vT2}, v{vT1}')
    a(f'v_cvt_pk_bf16_f32 v{vT1}, v{vT1}, v{vT1}')
    a(f'v_lshlrev_b32 v{vT}, 1, v0')
    a(f'buffer_store_short v{vT1}, v{vT}, s[{SO}:{SO+3}], 0 offen')
    a.label('D_done')
    a('s_endpgm')
    return 60


def build(W=16, G=4, NT=' nt'):
    hdr = open('cdna_kernels/%s.s.ref' % NAME).read().split('\n')
    cm = [l for l in hdr if l.startswith(';') and '@launch' not in l and 'Override launch' not in l and 'grid=ceil' not in l]
    out = []
    out += cm
    out.append('; @launch kernel=attn_kernel grid=(256,1,1) block=(1024,1,1) lds=%d' % A_LDS_SIZE)
    out.append('; @launch kernel=wo_kernel grid=(256,1,1) block=(256,1,1) lds=3072')
    out.append('; @launch kernel=geglu_kernel grid=(56,1,1) block=(256,1,1) lds=6208')
    out.append('; @launch kernel=down_kernel grid=(32,1,1) block=(512,1,1) lds=2048')
    out.append('.amdgcn_target "amdgcn-amd-amdhsa--gfx950"')
    out.append('.text')
    descs = []
    for name, fn in (('attn_kernel', lambda a: gen_attn(a, W, G, NT)), ('wo_kernel', gen_wo),
                     ('geglu_kernel', gen_geglu), ('down_kernel', gen_down)):
        a = Asm()
        a.raw(f'.globl {name}')
        a.raw('.p2align 8')
        a.raw(f'.type {name},@function')
        nv = fn(a)
        out.append(a.text())
        descs.append(kernel_desc(name, nv))
    out.append('.section .rodata,"a"')
    for d in descs:
        out.append('.p2align 6')
        out.append(d)
    return '\n'.join(out)


if __name__ == '__main__':
    txt = build()
    probs = check_hazards(txt)
    path = sys.argv[1] if len(sys.argv) > 1 else 'cdna_kernels/%s.s' % NAME
    open(path, 'w').write(txt)
    print('written', path, 'hazards:', len(probs))
```

```python
import sys
from asmlib import Asm, check_hazards

NAME = 'sequential_preLN__mha_block_cached__geglu_ffn__decode'

WS_PART = 0x0
WS_PW = 0x100000
WS_H = 0x200000
WS_ACT = 0x201000

LOG2E = 0x3fb8aa3b
SCALE = 0x3db504f3
EPS = 0x3727c5ac
INV512 = 0x3b000000

DPPM = 'row_mask:0xf bank_mask:0xf'


def rnd(a, reg, tmp):
    a(f'v_cvt_pk_bf16_f32 v{tmp}, v{reg}, v{reg}')
    a(f'v_lshlrev_b32 v{reg}, 16, v{tmp}')


def row_allreduce(a, op, reg, rors=(8, 4, 2, 1)):
    for r in rors:
        a('s_nop 1')
        a(f'{op}_dpp v{reg}, v{reg}, v{reg} row_ror:{r} {DPPM}')


def wave_allreduce_sum(a, reg, s0):
    row_allreduce(a, 'v_add_f32', reg)
    a('s_nop 0')
    for i in range(4):
        a(f'v_readlane_b32 s{s0+i}, v{reg}, {16*i}')
    a('s_nop 1')
    a(f'v_mov_b32 v{reg}, s{s0}')
    for i in range(1, 4):
        a(f'v_add_f32 v{reg}, s{s0+i}, v{reg}')


def srd(a, s, lo, hi, size):
    a(f's_mov_b32 s{s}, s{lo}')
    a(f's_mov_b32 s{s+1}, s{hi}')
    a(f's_mov_b32 s{s+2}, {size}')
    a(f's_mov_b32 s{s+3}, 0x00020000')


def srd_off(a, s, lo, hi, soff, size):
    a(f's_add_u32 s{s}, s{lo}, s{soff}')
    a(f's_addc_u32 s{s+1}, s{hi}, 0')
    if isinstance(size, str):
        tot = int(size.split(':')[1])
        a(f's_sub_u32 s{s+2}, {tot}, s{soff}')
    else:
        a(f's_mov_b32 s{s+2}, {size}')
    a(f's_mov_b32 s{s+3}, 0x00020000')


def kernel_desc(name, vgpr, sgpr=102, extra=''):
    acc = ((vgpr + 3) // 4) * 4
    return f'''.amdhsa_kernel {name}
  .amdhsa_next_free_vgpr {vgpr}
  .amdhsa_next_free_sgpr {sgpr}
  .amdhsa_accum_offset {acc}
  .amdhsa_group_segment_fixed_size 0
  .amdhsa_kernarg_size 96
  .amdhsa_user_sgpr_count 2
  .amdhsa_user_sgpr_kernarg_segment_ptr 1
  .amdhsa_system_sgpr_workgroup_id_x 1
{extra}.end_amdhsa_kernel
'''

A_LDS_XN = 0
A_LDS_Q = 2048
A_LDS_ML = 2304
A_LDS_QP = 4096
A_LDS_O = 4096
A_LDS_SIZE = 4096 + 32768


def gen_attn(a, W=16, G=4, NT=' nt'):
    vTid, vL16, vLane, vT = 0, 1, 2, 3
    vX = 4
    vQ = 12
    vAcc = 16
    vM, vL, vT1, vT2 = 24, 25, 26, 27
    vS = 28
    vWin = 60
    nv = vWin + 4 * W
    sW, sH, sC = 14, 15, 3
    SX, SWQ, SK, SV, SWS = 16, 20, 24, 28, 32
    sOff, sTmp, sLog2e = 36, 38, 39
    sR = 40

    a.label('attn_kernel')
    a('s_cmp_ge_u32 s2, 256')
    a('s_cbranch_scc1 A_done')
    a('s_load_dwordx4 s[4:7], s[0:1], 0')
    a('s_load_dwordx4 s[8:11], s[0:1], 16')
    a('s_load_dwordx2 s[12:13], s[0:1], 88')
    a(f'v_and_b32 v{vLane}, 63, v0')
    a(f'v_lshrrev_b32 v{vT}, 6, v0')
    a('s_nop 0')
    a(f'v_readfirstlane_b32 s{sW}, v{vT}')
    a(f's_and_b32 s{sH}, s2, 31')
    a(f's_lshr_b32 s{sC}, s2, 5')
    a(f'v_lshlrev_b32 v{vL16}, 4, v{vLane}')
    a(f's_mov_b32 s{sLog2e}, {LOG2E:#x}')
    a('s_waitcnt lgkmcnt(0)')
    srd(a, SX, 4, 5, 1024)
    a(f's_lshl_b32 s{sTmp}, s{sH}, 8')
    srd_off(a, SWQ, 10, 11, sTmp, 'rem:4194304')
    a(f's_lshl_b32 s{sTmp}, s{sH}, 22')
    a(f's_lshl_b32 s{sOff}, s{sC}, 19')
    a(f's_add_u32 s{sTmp}, s{sTmp}, s{sOff}')
    a(f's_lshl_b32 s{sOff}, s{sW}, 15')
    a(f's_add_u32 s{sTmp}, s{sTmp}, s{sOff}')
    srd_off(a, SK, 6, 7, sTmp, 32768)
    srd_off(a, SV, 8, 9, sTmp, 32768)
    a(f's_lshl_b32 s{sTmp}, s{sH}, 3')
    a(f's_add_u32 s{sTmp}, s{sTmp}, s{sC}')
    a(f's_lshl_b32 s{sTmp}, s{sTmp}, 10')
    a(f's_add_u32 s{sTmp}, s{sTmp}, {WS_PART}')
    srd_off(a, SWS, 12, 13, sTmp, 1024)

    a(f'buffer_load_dwordx4 v[{vX}:{vX+3}], v{vL16}, s[{SX}:{SX+3}], 0 offen')
    a(f'v_lshrrev_b32 v{vT}, 4, v{vLane}')
    a(f'v_lshlrev_b32 v{vT}, 13, v{vT}')
    a(f'v_and_b32 v{vT1}, 15, v{vLane}')
    a(f'v_lshl_add_u32 v{vT}, v{vT1}, 4, v{vT}')
    a(f's_lshl_b32 s{sOff}, s{sW}, 18')
    for i in range(8):
        a(f'buffer_load_dwordx4 v[{vS+4*i}:{vS+4*i+3}], v{vT}, s[{SWQ}:{SWQ+3}], s{sOff} offen')
        if i < 7:
            a(f's_add_u32 s{sOff}, s{sOff}, 0x8000')

    def issue(i):
        slot = i % W
        t = i % 32
        srdn = SK if i < 32 else SV
        if t % 4 == 0:
            a(f's_mov_b32 s{sOff}, {(t // 4) * 4096}')
        a(f'buffer_load_dwordx4 v[{vWin+4*slot}:{vWin+4*slot+3}], v{vL16}, s[{srdn}:{srdn+3}], s{sOff} offen offset:{(t % 4) * 1024}{NT}')

    for i in range(W):
        issue(i)

    vF = vAcc
    a(f's_waitcnt vmcnt({8 + W})')
    for j in range(4):
        a(f'v_lshlrev_b32 v{vF+2*j}, 16, v{vX+j}')
        a(f'v_and_b32 v{vF+2*j+1}, 0xffff0000, v{vX+j}')
    a(f'v_add_f32 v{vT}, v{vF}, v{vF+1}')
    a(f'v_add_f32 v{vT1}, v{vF+2}, v{vF+3}')
    a(f'v_add_f32 v{vT2}, v{vF+4}, v{vF+5}')
    a(f'v_add_f32 v{vM}, v{vF+6}, v{vF+7}')
    a(f'v_add_f32 v{vT}, v{vT}, v{vT1}')
    a(f'v_add_f32 v{vT2}, v{vT2}, v{vM}')
    a(f'v_add_f32 v{vT}, v{vT}, v{vT2}')
    wave_allreduce_sum(a, vT, sR)
    vMean = vM
    a(f'v_mul_f32 v{vMean}, {INV512:#x}, v{vT}')
    vCn = vX
    for e in range(8):
        a(f'v_sub_f32 v{vCn+e}, v{vF+e}, v{vMean}')
    a(f'v_mul_f32 v{vT}, v{vCn}, v{vCn}')
    for e in range(1, 8):
        a(f'v_fmac_f32 v{vT}, v{vCn+e}, v{vCn+e}')
    wave_allreduce_sum(a, vT, sR)
    a(f'v_mul_f32 v{vT}, {INV512:#x}, v{vT}')
    rnd(a, vMean, vT1)
    rnd(a, vT, vT1)
    a(f'v_add_f32 v{vT}, {EPS:#x}, v{vT}')
    rnd(a, vT, vT1)
    a(f'v_sqrt_f32 v{vT1}, v{vT}')
    a('s_nop 0')
    a(f'v_fma_f32 v{vT2}, -v{vT1}, v{vT1}, v{vT}')
    a(f'v_rcp_f32 v{vL}, v{vT1}')
    a('s_nop 0')
    a(f'v_mul_f32 v{vL}, 0.5, v{vL}')
    a(f'v_fma_f32 v{vT1}, v{vT2}, v{vL}, v{vT1}')
    rnd(a, vT1, vT2)
    a(f'v_rcp_f32 v{vL}, v{vT1}')
    for e in range(8):
        a(f'v_sub_f32 v{vCn+e}, v{vF+e}, v{vMean}')
    for e in range(8):
        rnd(a, vCn + e, vT2)
    for e in range(8):
        a(f'v_mul_f32 v{vF+e}, v{vCn+e}, v{vL}')
        a(f'v_fma_f32 v{vT2}, -v{vF+e}, v{vT1}, v{vCn+e}')
        a(f'v_fma_f32 v{vF+e}, v{vT2}, v{vL}, v{vF+e}')
        rnd(a, vF + e, vT2)
    a(f'v_lshlrev_b32 v{vT}, 5, v{vLane}')
    a(f'ds_write_b128 v{vT}, v[{vF}:{vF+3}] offset:{A_LDS_XN}')
    a(f'ds_write_b128 v{vT}, v[{vF+4}:{vF+7}] offset:{A_LDS_XN+16}')
    a(f'v_lshrrev_b32 v{vT1}, 4, v{vLane}')
    a(f'v_lshlrev_b32 v{vT1}, 2, v{vT1}')
    a(f's_lshl_b32 s{sTmp}, s{sW}, 7')
    a(f'v_add_u32 v{vT1}, s{sTmp}, v{vT1}')
    a('s_waitcnt lgkmcnt(0)')
    for i in range(8):
        a(f'ds_read_b32 v{vX+i}, v{vT1} offset:{A_LDS_XN + 16*i}')
    a(f's_waitcnt vmcnt({W}) lgkmcnt(0)')
    for i in range(8):
        for j in range(4):
            wr = vS + 4 * i + j
            a(f'v_lshlrev_b32 v{vT1}, 16, v{wr}')
            a(f'v_and_b32 v{vT2}, 0xffff0000, v{wr}')
            if i == 0:
                a(f'v_mul_f32 v{vAcc+2*j}, v{vX+i}, v{vT1}')
                a(f'v_mul_f32 v{vAcc+2*j+1}, v{vX+i}, v{vT2}')
            else:
                a(f'v_fmac_f32 v{vAcc+2*j}, v{vX+i}, v{vT1}')
                a(f'v_fmac_f32 v{vAcc+2*j+1}, v{vX+i}, v{vT2}')
    a(f's_lshl_b32 s{sTmp}, s{sW}, 11')
    a(f'v_add_u32 v{vT}, s{sTmp}, v{vT}')
    a(f'ds_write_b128 v{vT}, v[{vAcc}:{vAcc+3}] offset:{A_LDS_QP}')
    a(f'ds_write_b128 v{vT}, v[{vAcc+4}:{vAcc+7}] offset:{A_LDS_QP+16}')
    a('s_waitcnt lgkmcnt(0)')
    a('s_barrier')
    a(f's_cmp_ge_u32 s{sW}, 2')
    a('s_cbranch_scc1 A_qdone')
    a(f'v_lshlrev_b32 v{vT}, 2, v0')
    vR = vS
    for b in range(2):
        for i in range(32):
            a(f'ds_read_b32 v{vR+i}, v{vT} offset:{A_LDS_QP + (b*32+i)*512}')
        a('s_waitcnt lgkmcnt(0)')
        for i in range(32):
            if b == 0 and i == 0:
                continue
            if b == 0 and i == 1:
                a(f'v_add_f32 v{vT1}, v{vR}, v{vR+1}')
            else:
                a(f'v_add_f32 v{vT1}, v{vT1}, v{vR+i}')
    a(f'v_cvt_pk_bf16_f32 v{vT1}, v{vT1}, v{vT1}')
    a(f'v_lshlrev_b32 v{vT2}, 1, v0')
    a(f'ds_write_b16 v{vT2}, v{vT1} offset:{A_LDS_Q}')
    a('s_waitcnt lgkmcnt(0)')
    a.label('A_qdone')
    a('s_barrier')
    a(f'v_and_b32 v{vT}, 15, v{vLane}')
    a(f'v_lshlrev_b32 v{vT}, 4, v{vT}')
    a(f'ds_read_b128 v[{vQ}:{vQ+3}], v{vT} offset:{A_LDS_Q}')
    a('s_waitcnt lgkmcnt(0)')

    def wait_for(g):
        outstanding = min(W, 64 - g)
        a(f's_waitcnt vmcnt({max(0, outstanding - G)})')

    for g in range(0, 32, G):
        wait_for(g)
        tiles = list(range(g, g + G))
        for j in range(4):
            for t in tiles:
                kr = vWin + 4 * (t % W) + j
                if j == 0:
                    a(f'v_dot2_f32_bf16 v{vS+t}, v{kr}, v{vQ+j}, 0')
                else:
                    a(f'v_dot2_f32_bf16 v{vS+t}, v{kr}, v{vQ+j}, v{vS+t}')
        for i in range(g + W, g + W + G):
            if i < 64:
                issue(i)
        for r in (8, 4, 2, 1):
            for t in tiles:
                a(f'v_add_f32_dpp v{vS+t}, v{vS+t}, v{vS+t} row_ror:{r} {DPPM}')
        for t in range(g, g + G, 2):
            sa, sb = vS + t, vS + t + 1
            a(f'v_cvt_pk_bf16_f32 v{vT}, v{sa}, v{sb}')
            a(f'v_lshlrev_b32 v{sa}, 16, v{vT}')
            a(f'v_and_b32 v{sb}, 0xffff0000, v{vT}')
            a(f'v_mul_f32 v{sa}, {SCALE:#x}, v{sa}')
            a(f'v_mul_f32 v{sb}, {SCALE:#x}, v{sb}')
            a(f'v_cvt_pk_bf16_f32 v{vT}, v{sa}, v{sb}')
            a(f'v_lshlrev_b32 v{sa}, 16, v{vT}')
            a(f'v_and_b32 v{sb}, 0xffff0000, v{vT}')
    a(f'v_max3_f32 v{vM}, v{vS}, v{vS+1}, v{vS+2}')
    for t in range(3, 31, 2):
        a(f'v_max3_f32 v{vM}, v{vM}, v{vS+t}, v{vS+t+1}')
    a(f'v_max_f32 v{vM}, v{vM}, v{vS+31}')
    a(f'v_mul_f32 v{vM}, s{sLog2e}, v{vM}')
    for t in range(32):
        a(f'v_fma_f32 v{vS+t}, v{vS+t}, s{sLog2e}, -v{vM}')
    for t in range(32):
        a(f'v_exp_f32 v{vS+t}, v{vS+t}')
    a(f'v_add_f32 v{vL}, v{vS}, v{vS+1}')
    for t in range(2, 32):
        a(f'v_add_f32 v{vL}, v{vL}, v{vS+t}')
    for g in range(32, 64, G):
        wait_for(g)
        for t in range(g, g + G):
            tt = t - 32
            for j in range(4):
                vr = vWin + 4 * (t % W) + j
                a(f'v_lshlrev_b32 v{vT1}, 16, v{vr}')
                a(f'v_and_b32 v{vT2}, 0xffff0000, v{vr}')
                if tt == 0:
                    a(f'v_mul_f32 v{vAcc+2*j}, v{vS+tt}, v{vT1}')
                    a(f'v_mul_f32 v{vAcc+2*j+1}, v{vS+tt}, v{vT2}')
                else:
                    a(f'v_fmac_f32 v{vAcc+2*j}, v{vS+tt}, v{vT1}')
                    a(f'v_fmac_f32 v{vAcc+2*j+1}, v{vS+tt}, v{vT2}')
        for i in range(g + W, g + W + G):
            if i < 64:
                issue(i)
    a(f'v_mov_b32 v{vT}, v{vM}')
    a(f'v_mov_b32 v{vT1}, v{vM}')
    a('s_nop 1')
    a(f'v_permlane32_swap_b32 v{vT}, v{vT1}')
    a('s_nop 1')
    a(f'v_max_f32 v{vT}, v{vT}, v{vT1}')
    a(f'v_mov_b32 v{vT1}, v{vT}')
    a('s_nop 1')
    a(f'v_permlane16_swap_b32 v{vT}, v{vT1}')
    a('s_nop 1')
    a(f'v_max_f32 v{vT}, v{vT}, v{vT1}')
    a(f'v_sub_f32 v{vT2}, v{vM}, v{vT}')
    a(f'v_exp_f32 v{vT2}, v{vT2}')
    a('s_nop 0')
    regs = [vAcc + j for j in range(8)] + [vL]
    for r in regs:
        a(f'v_mul_f32 v{r}, v{vT2}, v{r}')
    tmp = [vS + j for j in range(9)]
    for swap in ('v_permlane32_swap_b32', 'v_permlane16_swap_b32'):
        for r, tm in zip(regs, tmp):
            a(f'v_mov_b32 v{tm}, v{r}')
        a('s_nop 1')
        for r, tm in zip(regs, tmp):
            a(f'{swap} v{r}, v{tm}')
        a('s_nop 1')
        for r, tm in zip(regs, tmp):
            a(f'v_add_f32 v{r}, v{r}, v{tm}')
    a(f'v_mov_b32 v{vT1}, v{vL}')
    a(f'v_mov_b32 v{vT2}, v{vT1}')
    a(f'v_mov_b32 v{vT1}, v{vT}')
    a(f'v_lshlrev_b32 v{vT}, 5, v{vLane}')
    a(f's_lshl_b32 s{sTmp}, s{sW}, 9')
    a(f'v_add_u32 v{vT}, s{sTmp}, v{vT}')
    a('s_mov_b64 exec, 0xffff')
    a(f'ds_write_b128 v{vT}, v[{vAcc}:{vAcc+3}] offset:{A_LDS_O}')
    a(f'ds_write_b128 v{vT}, v[{vAcc+4}:{vAcc+7}] offset:{A_LDS_O+16}')
    a(f's_lshl_b32 s{sTmp}, s{sW}, 3')
    a(f'v_mov_b32 v{vT}, s{sTmp}')
    a(f'ds_write_b64 v{vT}, v[{vT1}:{vT2}] offset:{A_LDS_ML}')
    a('s_mov_b64 exec, -1')
    a('s_waitcnt lgkmcnt(0)')
    a('s_barrier')
    a(f's_cmp_ge_u32 s{sW}, 2')
    a('s_cbranch_scc1 A_done')
    vML = vS
    vO = vWin
    a(f'v_mov_b32 v{vT}, 0')
    for w in range(16):
        a(f'ds_read_b64 v[{vML+2*w}:{vML+2*w+1}], v{vT} offset:{A_LDS_ML + 8*w}')
    a(f'v_lshlrev_b32 v{vT}, 2, v0')
    for w in range(16):
        a(f'ds_read_b32 v{vO+w}, v{vT} offset:{A_LDS_O + 512*w}')
    a('s_waitcnt lgkmcnt(0)')
    a(f'v_max3_f32 v{vM}, v{vML}, v{vML+2}, v{vML+4}')
    for w in range(3, 15, 2):
        a(f'v_max3_f32 v{vM}, v{vM}, v{vML+2*w}, v{vML+2*w+2}')
    a(f'v_max_f32 v{vM}, v{vM}, v{vML+30}')
    for w in range(16):
        a(f'v_sub_f32 v{vML+2*w}, v{vML+2*w}, v{vM}')
    for w in range(16):
        a(f'v_exp_f32 v{vML+2*w}, v{vML+2*w}')
    a('s_nop 0')
    a(f'v_mul_f32 v{vL}, v{vML}, v{vML+1}')
    a(f'v_mul_f32 v{vAcc}, v{vML}, v{vO}')
    for w in range(1, 16):
        a(f'v_fmac_f32 v{vL}, v{vML+2*w}, v{vML+2*w+1}')
        a(f'v_fmac_f32 v{vAcc}, v{vML+2*w}, v{vO+w}')
    a(f'buffer_store_dword v{vAcc}, v{vT}, s[{SWS}:{SWS+3}], 0 offen')
    a(f'v_mov_b32 v{vT1}, v{vM}')
    a(f'v_mov_b32 v{vT2}, v{vL}')
    a(f'v_mov_b32 v{vT}, 512')
    a('s_mov_b64 exec, 1')
    a(f'buffer_store_dwordx2 v[{vT1}:{vT2}], v{vT}, s[{SWS}:{SWS+3}], 0 offen')
    a('s_mov_b64 exec, -1')
    a.label('A_done')
    a('s_endpgm')
    return nv


WS_PG = 0x300000
WS_PD = 0x400000


def unpack_fma(a, vw, nload, vmul, vacc, vT1, vT2):
    for i in range(nload):
        for j in range(4):
            wr = vw + 4 * i + j
            a(f'v_lshlrev_b32 v{vT1}, 16, v{wr}')
            a(f'v_and_b32 v{vT2}, 0xffff0000, v{wr}')
            if i == 0:
                a(f'v_mul_f32 v{vacc+2*j}, v{vmul+i}, v{vT1}')
                a(f'v_mul_f32 v{vacc+2*j+1}, v{vmul+i}, v{vT2}')
            else:
                a(f'v_fmac_f32 v{vacc+2*j}, v{vmul+i}, v{vT1}')
                a(f'v_fmac_f32 v{vacc+2*j+1}, v{vmul+i}, v{vT2}')


def gen_wo(a):
    vLane, vT, vT1, vT2 = 1, 2, 3, 4
    vWt = 8
    vOp = 24
    vMLp = 32
    vAcc = 48
    vOr = 56
    sW, sH, sCc = 14, 15, 3
    SWO, SP, SPW = 16, 20, 24
    sTmp, sOff = 28, 29
    LDS_O = 0; LDS_P = 512
    a.label('wo_kernel')
    a('s_cmp_ge_u32 s2, 256')
    a('s_cbranch_scc1 W_done')
    a('s_load_dwordx2 s[4:5], s[0:1], 32')
    a('s_load_dwordx2 s[6:7], s[0:1], 88')
    a(f'v_and_b32 v{vLane}, 63, v0')
    a(f'v_lshrrev_b32 v{vT}, 6, v0')
    a('s_nop 0')
    a(f'v_readfirstlane_b32 s{sW}, v{vT}')
    a(f's_lshr_b32 s{sH}, s2, 3')
    a(f's_and_b32 s{sCc}, s2, 7')
    a('s_waitcnt lgkmcnt(0)')
    a(f's_lshl_b32 s{sTmp}, s{sH}, 17')
    a(f's_lshl_b32 s{sOff}, s{sCc}, 7')
    a(f's_add_u32 s{sTmp}, s{sTmp}, s{sOff}')
    srd_off(a, SWO, 4, 5, sTmp, 'rem:4194304')
    a(f's_lshl_b32 s{sTmp}, s{sH}, 13')
    a(f's_add_u32 s{sTmp}, s{sTmp}, {WS_PART}')
    srd_off(a, SP, 6, 7, sTmp, 8192)
    a(f's_lshl_b32 s{sTmp}, s{sH}, 11')
    a(f's_lshl_b32 s{sOff}, s{sCc}, 8')
    a(f's_add_u32 s{sTmp}, s{sTmp}, s{sOff}')
    a(f's_add_u32 s{sTmp}, s{sTmp}, {WS_PW}')
    srd_off(a, SPW, 6, 7, sTmp, 256)
    a(f'v_and_b32 v{vT1}, 127, v0')
    a(f'v_lshlrev_b32 v{vT1}, 2, v{vT1}')
    a(f'v_mov_b32 v{vT2}, 512')
    a(f's_mov_b32 s{sOff}, 4096')
    for c8 in range(8):
        so = '0' if c8 < 4 else f's{sOff}'
        a(f'buffer_load_dword v{vOp+c8}, v{vT1}, s[{SP}:{SP+3}], {so} offen offset:{(c8%4)*1024}')
    for c8 in range(8):
        so = '0' if c8 < 4 else f's{sOff}'
        a(f'buffer_load_dwordx2 v[{vMLp+2*c8}:{vMLp+2*c8+1}], v{vT2}, s[{SP}:{SP+3}], {so} offen offset:{(c8%4)*1024}')
    a(f'v_lshrrev_b32 v{vT}, 3, v{vLane}')
    a(f'v_lshlrev_b32 v{vT}, 10, v{vT}')
    a(f'v_and_b32 v{vT1}, 7, v{vLane}')
    a(f'v_lshl_add_u32 v{vT}, v{vT1}, 4, v{vT}')
    a(f's_lshl_b32 s{sOff}, s{sW}, 15')
    for i in range(4):
        a(f'buffer_load_dwordx4 v[{vWt+4*i}:{vWt+4*i+3}], v{vT}, s[{SWO}:{SWO+3}], s{sOff} offen')
        if i < 3:
            a(f's_add_u32 s{sOff}, s{sOff}, 0x2000')
    a('s_waitcnt vmcnt(4)')
    a(f'v_max3_f32 v{vT}, v{vMLp}, v{vMLp+2}, v{vMLp+4}')
    a(f'v_max3_f32 v{vT}, v{vT}, v{vMLp+6}, v{vMLp+8}')
    a(f'v_max3_f32 v{vT}, v{vT}, v{vMLp+10}, v{vMLp+12}')
    a(f'v_max_f32 v{vT}, v{vT}, v{vMLp+14}')
    for c8 in range(8):
        a(f'v_sub_f32 v{vMLp+2*c8}, v{vMLp+2*c8}, v{vT}')
    for c8 in range(8):
        a(f'v_exp_f32 v{vMLp+2*c8}, v{vMLp+2*c8}')
    a('s_nop 0')
    a(f'v_mul_f32 v{vT}, v{vMLp}, v{vMLp+1}')
    a(f'v_mul_f32 v{vT1}, v{vMLp}, v{vOp}')
    for c8 in range(1, 8):
        a(f'v_fmac_f32 v{vT}, v{vMLp+2*c8}, v{vMLp+2*c8+1}')
        a(f'v_fmac_f32 v{vT1}, v{vMLp+2*c8}, v{vOp+c8}')
    a(f'v_rcp_f32 v{vT2}, v{vT}')
    a('s_nop 0')
    a(f'v_mul_f32 v{vOp}, v{vT1}, v{vT2}')
    a(f'v_fma_f32 v{vOp+1}, -v{vOp}, v{vT}, v{vT1}')
    a(f'v_fma_f32 v{vOp}, v{vOp+1}, v{vT2}, v{vOp}')
    rnd(a, vOp, vT)
    a(f'v_and_b32 v{vT1}, 127, v0')
    a(f'v_lshlrev_b32 v{vT}, 2, v{vT1}')
    a(f'ds_write_b32 v{vT}, v{vOp} offset:{LDS_O}')
    a('s_waitcnt lgkmcnt(0)')
    a('s_barrier')
    a(f'v_lshrrev_b32 v{vT}, 3, v{vLane}')
    a(f'v_lshlrev_b32 v{vT}, 2, v{vT}')
    a(f's_lshl_b32 s{sTmp}, s{sW}, 7')
    a(f'v_add_u32 v{vT}, s{sTmp}, v{vT}')
    for i in range(4):
        a(f'ds_read_b32 v{vOr+i}, v{vT} offset:{LDS_O + 32*i}')
    a('s_waitcnt vmcnt(0) lgkmcnt(0)')
    unpack_fma(a, vWt, 4, vOr, vAcc, vT1, vT2)
    a('s_nop 1')
    for j in range(8):
        a(f'v_add_f32_dpp v{vAcc+j}, v{vAcc+j}, v{vAcc+j} row_ror:8 {DPPM}')
    a(f'v_lshrrev_b32 v{vT}, 4, v{vLane}')
    a(f'v_lshlrev_b32 v{vT}, 8, v{vT}')
    a(f'v_and_b32 v{vT1}, 7, v{vLane}')
    a(f'v_lshl_add_u32 v{vT}, v{vT1}, 5, v{vT}')
    a(f's_lshl_b32 s{sTmp}, s{sW}, 10')
    a(f'v_add_u32 v{vT}, s{sTmp}, v{vT}')
    a('s_mov_b32 s30, 0x00ff00ff')
    a('s_mov_b32 s31, 0x00ff00ff')
    a('s_mov_b64 exec, s[30:31]')
    a(f'ds_write_b128 v{vT}, v[{vAcc}:{vAcc+3}] offset:{LDS_P}')
    a(f'ds_write_b128 v{vT}, v[{vAcc+4}:{vAcc+7}] offset:{LDS_P+16}')
    a('s_mov_b64 exec, -1')
    a('s_waitcnt lgkmcnt(0)')
    a('s_barrier')
    a(f's_cmp_ge_u32 s{sW}, 1')
    a('s_cbranch_scc1 W_done')
    a(f'v_lshlrev_b32 v{vT}, 2, v0')
    for i in range(16):
        a(f'ds_read_b32 v{vMLp+i}, v{vT} offset:{LDS_P + 256*i}')
    a('s_waitcnt lgkmcnt(0)')
    a(f'v_add_f32 v{vT1}, v{vMLp}, v{vMLp+1}')
    for i in range(2, 16):
        a(f'v_add_f32 v{vT1}, v{vT1}, v{vMLp+i}')
    a(f'buffer_store_dword v{vT1}, v{vT}, s[{SPW}:{SPW+3}], 0 offen')
    a.label('W_done')
    a('s_endpgm')
    return 60


def gen_geglu(a):
    vLane, vT, vT1, vT2, vT3 = 1, 2, 3, 4, 5
    vH0, vH1 = 6, 7
    vPW = 8
    vWg = 72
    vWu = 80
    vHn = 88
    vAg = 92
    vAu = 100
    vMean, vVar = 8, 9
    sW, sRr, sCc = 14, 15, 3
    SG, SU, SPW, SX, SH, SPG = 16, 20, 24, 28, 32, 36
    sTmp, sOff, sR = 40, 41, 44
    LDS_R = 0
    LDS_HN = 64
    LDS_P = 64 + 2048
    a.label('geglu_kernel')
    a('s_cmp_ge_u32 s2, 224')
    a('s_cbranch_scc1 G_done')
    a('s_load_dwordx2 s[4:5], s[0:1], 0')
    a('s_load_dwordx4 s[8:11], s[0:1], 48')
    a('s_load_dwordx2 s[6:7], s[0:1], 88')
    a(f'v_and_b32 v{vLane}, 63, v0')
    a(f'v_lshrrev_b32 v{vT}, 6, v0')
    a('s_nop 0')
    a(f'v_readfirstlane_b32 s{sW}, v{vT}')
    a(f's_lshr_b32 s{sCc}, s2, 3')
    a(f's_and_b32 s{sRr}, s2, 7')
    a('s_waitcnt lgkmcnt(0)')
    a(f's_mul_i32 s{sTmp}, s{sRr}, {64*3584}')
    a(f's_lshl_b32 s{sOff}, s{sCc}, 7')
    a(f's_add_u32 s{sTmp}, s{sTmp}, s{sOff}')
    srd_off(a, SG, 8, 9, sTmp, 'rem:1835008')
    srd_off(a, SU, 10, 11, sTmp, 'rem:1835008')
    a(f's_mov_b32 s{sTmp}, {WS_PW}')
    srd_off(a, SPW, 6, 7, sTmp, 65536)
    srd(a, SX, 4, 5, 1024)
    a(f's_mov_b32 s{sTmp}, {WS_H}')
    srd_off(a, SH, 6, 7, sTmp, 2048)
    a(f's_mul_i32 s{sTmp}, s{sRr}, 14336')
    a(f's_lshl_b32 s{sOff}, s{sCc}, 8')
    a(f's_add_u32 s{sTmp}, s{sTmp}, s{sOff}')
    a(f's_add_u32 s{sTmp}, s{sTmp}, {WS_PG}')
    srd_off(a, SPG, 6, 7, sTmp, 7168 + 256)
    a(f'v_lshlrev_b32 v{vT}, 3, v0')
    for r in range(32):
        a(f'buffer_load_dwordx2 v[{vPW+2*r}:{vPW+2*r+1}], v{vT}, s[{SPW}:{SPW+3}], 0 offen offset:{(r%2)*2048}')
        if r % 2 == 1 and r < 31:
            a(f'v_add_u32 v{vT}, 4096, v{vT}')
    a(f'v_lshlrev_b32 v{vT1}, 2, v0')
    a(f'buffer_load_dword v{vT3}, v{vT1}, s[{SX}:{SX+3}], 0 offen')
    a(f'v_lshrrev_b32 v{vT}, 3, v{vLane}')
    a(f'v_mul_u32_u24 v{vT}, 3584, v{vT}')
    a(f'v_and_b32 v{vT1}, 7, v{vLane}')
    a(f'v_lshl_add_u32 v{vT}, v{vT1}, 4, v{vT}')
    a(f's_mul_i32 s{sOff}, s{sW}, {16*3584}')
    for i in range(2):
        a(f'buffer_load_dwordx4 v[{vWg+4*i}:{vWg+4*i+3}], v{vT}, s[{SG}:{SG+3}], s{sOff} offen')
        a(f'buffer_load_dwordx4 v[{vWu+4*i}:{vWu+4*i+3}], v{vT}, s[{SU}:{SU+3}], s{sOff} offen')
        if i < 1:
            a(f's_add_u32 s{sOff}, s{sOff}, {8*3584}')
    a('s_waitcnt vmcnt(4)')
    a(f'v_add_f32 v{vH0}, v{vPW}, v{vPW+2}')
    a(f'v_add_f32 v{vH1}, v{vPW+1}, v{vPW+3}')
    for r in range(2, 32):
        a(f'v_add_f32 v{vH0}, v{vH0}, v{vPW+2*r}')
        a(f'v_add_f32 v{vH1}, v{vH1}, v{vPW+2*r+1}')
    rnd(a, vH0, vT)
    rnd(a, vH1, vT)
    a(f'v_lshlrev_b32 v{vT1}, 16, v{vT3}')
    a(f'v_and_b32 v{vT2}, 0xffff0000, v{vT3}')
    a(f'v_add_f32 v{vH0}, v{vT1}, v{vH0}')
    a(f'v_add_f32 v{vH1}, v{vT2}, v{vH1}')
    rnd(a, vH0, vT)
    rnd(a, vH1, vT)
    a('s_cmp_lg_u32 s2, 0')
    a('s_cbranch_scc1 G_noh')
    a(f'v_lshlrev_b32 v{vT1}, 3, v0')
    a(f'buffer_store_dwordx2 v[{vH0}:{vH1}], v{vT1}, s[{SH}:{SH+3}], 0 offen')
    a.label('G_noh')
    a(f'v_add_f32 v{vT}, v{vH0}, v{vH1}')
    wave_allreduce_sum(a, vT, sR)
    a(f's_lshl_b32 s{sTmp}, s{sW}, 2')
    a(f'v_mov_b32 v{vT1}, s{sTmp}')
    a(f'ds_write_b32 v{vT1}, v{vT} offset:{LDS_R}')
    a('s_waitcnt lgkmcnt(0)')
    a('s_barrier')
    a(f'v_mov_b32 v{vT1}, 0')
    a(f'ds_read_b128 v[{vPW}:{vPW+3}], v{vT1} offset:{LDS_R}')
    a('s_waitcnt lgkmcnt(0)')
    a(f'v_add_f32 v{vT}, v{vPW}, v{vPW+1}')
    a(f'v_add_f32 v{vT1}, v{vPW+2}, v{vPW+3}')
    a(f'v_add_f32 v{vT}, v{vT}, v{vT1}')
    a(f'v_mul_f32 v{vMean}, {INV512:#x}, v{vT}')
    a(f'v_sub_f32 v{vT1}, v{vH0}, v{vMean}')
    a(f'v_sub_f32 v{vT2}, v{vH1}, v{vMean}')
    a(f'v_mul_f32 v{vT}, v{vT1}, v{vT1}')
    a(f'v_fmac_f32 v{vT}, v{vT2}, v{vT2}')
    wave_allreduce_sum(a, vT, sR)
    a(f'v_mov_b32 v{vT1}, s{sTmp}')
    a(f'ds_write_b32 v{vT1}, v{vT} offset:{LDS_R+16}')
    a('s_waitcnt lgkmcnt(0)')
    a('s_barrier')
    a(f'v_mov_b32 v{vT1}, 0')
    a(f'ds_read_b128 v[{vPW+4}:{vPW+7}], v{vT1} offset:{LDS_R+16}')
    a('s_waitcnt lgkmcnt(0)')
    a(f'v_add_f32 v{vT}, v{vPW+4}, v{vPW+5}')
    a(f'v_add_f32 v{vT1}, v{vPW+6}, v{vPW+7}')
    a(f'v_add_f32 v{vT}, v{vT}, v{vT1}')
    a(f'v_mul_f32 v{vVar}, {INV512:#x}, v{vT}')
    rnd(a, vMean, vT)
    rnd(a, vVar, vT)
    a(f'v_add_f32 v{vVar}, {EPS:#x}, v{vVar}')
    rnd(a, vVar, vT)
    a(f'v_sqrt_f32 v{vT1}, v{vVar}')
    a('s_nop 0')
    a(f'v_fma_f32 v{vT2}, -v{vT1}, v{vT1}, v{vVar}')
    a(f'v_rcp_f32 v{vT3}, v{vT1}')
    a('s_nop 0')
    a(f'v_mul_f32 v{vT3}, 0.5, v{vT3}')
    a(f'v_fma_f32 v{vT1}, v{vT2}, v{vT3}, v{vT1}')
    rnd(a, vT1, vT2)
    a(f'v_rcp_f32 v{vT3}, v{vT1}')
    for (h, o) in ((vH0, 10), (vH1, 11)):
        a(f'v_sub_f32 v{o}, v{h}, v{vMean}')
        rnd(a, o, vT2)
        a(f'v_mul_f32 v12, v{o}, v{vT3}')
        a(f'v_fma_f32 v13, -v12, v{vT1}, v{o}')
        a(f'v_fma_f32 v{o}, v13, v{vT3}, v12')
        rnd(a, o, vT2)
    a(f'v_lshlrev_b32 v{vT}, 3, v0')
    a(f'ds_write_b64 v{vT}, v[10:11] offset:{LDS_HN}')
    a('s_waitcnt lgkmcnt(0)')
    a('s_barrier')
    a(f'v_lshrrev_b32 v{vT}, 3, v{vLane}')
    a(f'v_lshlrev_b32 v{vT}, 2, v{vT}')
    a(f's_lshl_b32 s{sTmp}, s{sW}, 6')
    a(f's_lshl_b32 s{sOff}, s{sRr}, 8')
    a(f's_add_u32 s{sTmp}, s{sTmp}, s{sOff}')
    a(f'v_add_u32 v{vT}, s{sTmp}, v{vT}')
    for i in range(2):
        a(f'ds_read_b32 v{vHn+i}, v{vT} offset:{LDS_HN + 32*i}')
    a('s_waitcnt vmcnt(0) lgkmcnt(0)')
    unpack_fma(a, vWg, 2, vHn, vAg, vT1, vT2)
    unpack_fma(a, vWu, 2, vHn, vAu, vT1, vT2)
    a('s_nop 1')
    for j in range(16):
        a(f'v_add_f32_dpp v{vAg+j}, v{vAg+j}, v{vAg+j} row_ror:8 {DPPM}')
    a(f'v_lshrrev_b32 v{vT}, 4, v{vLane}')
    a(f'v_lshlrev_b32 v{vT}, 9, v{vT}')
    a(f'v_and_b32 v{vT1}, 7, v{vLane}')
    a(f'v_lshl_add_u32 v{vT}, v{vT1}, 5, v{vT}')
    a(f's_lshl_b32 s{sTmp}, s{sW}, 11')
    a(f'v_add_u32 v{vT}, s{sTmp}, v{vT}')
    a('s_mov_b32 s42, 0x00ff00ff')
    a('s_mov_b32 s43, 0x00ff00ff')
    a('s_mov_b64 exec, s[42:43]')
    a(f'ds_write_b128 v{vT}, v[{vAg}:{vAg+3}] offset:{LDS_P}')
    a(f'ds_write_b128 v{vT}, v[{vAg+4}:{vAg+7}] offset:{LDS_P+16}')
    a(f'ds_write_b128 v{vT}, v[{vAu}:{vAu+3}] offset:{LDS_P+256}')
    a(f'ds_write_b128 v{vT}, v[{vAu+4}:{vAu+7}] offset:{LDS_P+272}')
    a('s_mov_b64 exec, -1')
    a('s_waitcnt lgkmcnt(0)')
    a('s_barrier')
    a(f's_cmp_ge_u32 s{sW}, 2')
    a('s_cbranch_scc1 G_done')
    a(f'v_lshlrev_b32 v{vT}, 2, v0')
    for i in range(16):
        a(f'ds_read_b32 v{vPW+i}, v{vT} offset:{LDS_P + 512*i}')
    a('s_waitcnt lgkmcnt(0)')
    a(f'v_add_f32 v{vT1}, v{vPW}, v{vPW+1}')
    for i in range(2, 16):
        a(f'v_add_f32 v{vT1}, v{vT1}, v{vPW+i}')
    a(f'v_lshrrev_b32 v{vT2}, 6, v0')
    a(f'v_mul_u32_u24 v{vT2}, 7168, v{vT2}')
    a(f'v_and_b32 v{vT}, 63, v0')
    a(f'v_lshl_add_u32 v{vT}, v{vT}, 2, v{vT2}')
    a(f'buffer_store_dword v{vT1}, v{vT}, s[{SPG}:{SPG+3}], 0 offen')
    a.label('G_done')
    a('s_endpgm')
    return 108


def gelu_mul(a, vG, vU, t0, t1, t2):
    a(f'v_mul_f32 v{t0}, v{vG}, v{vG}')
    a(f'v_mul_f32 v{t0}, v{t0}, v{vG}')
    a(f'v_mov_b32 v{t1}, 0x3d372713')
    a(f'v_fma_f32 v{t0}, v{t0}, v{t1}, v{vG}')
    a(f'v_mul_f32 v{t0}, 0x3f4c422a, v{t0}')
    a(f'v_mul_f32 v{t0}, 0x4038aa3b, v{t0}')
    a(f'v_exp_f32 v{t0}, v{t0}')
    a('s_nop 0')
    a(f'v_add_f32 v{t0}, 1.0, v{t0}')
    a(f'v_rcp_f32 v{t1}, v{t0}')
    a('s_nop 0')
    a(f'v_fma_f32 v{t2}, -v{t0}, v{t1}, 1.0')
    a(f'v_fma_f32 v{t1}, v{t2}, v{t1}, v{t1}')
    a(f'v_fma_f32 v{t1}, v{t1}, -2.0, 1.0')
    a(f'v_add_f32 v{t1}, 1.0, v{t1}')
    a(f'v_mul_f32 v{t0}, 0.5, v{vG}')
    a(f'v_mul_f32 v{t0}, v{t0}, v{t1}')
    rnd(a, t0, t1)
    a(f'v_mul_f32 v{vG}, v{t0}, v{vU}')
    rnd(a, vG, t1)


def gen_down(a):
    vLane, vT, vT1, vT2 = 0, 2, 3, 4
    vPG = 8
    vWd = 24
    vAct = 52
    vAcc = 60
    sRr, sCc = 15, 3
    SD, SPG, SPD = 16, 20, 24
    sTmp, sOff = 28, 29
    LDS_A = 0; LDS_P = 256
    a.label('down_kernel')
    a('s_cmp_ge_u32 s2, 256')
    a('s_cbranch_scc1 D_done')
    a('s_load_dwordx2 s[4:5], s[0:1], 64')
    a('s_load_dwordx2 s[6:7], s[0:1], 88')
    a(f's_lshr_b32 s{sRr}, s2, 3')
    a(f's_and_b32 s{sCc}, s2, 7')
    a('s_waitcnt lgkmcnt(0)')
    a(f's_mul_i32 s{sTmp}, s{sRr}, {56*1024}')
    a(f's_lshl_b32 s{sOff}, s{sCc}, 7')
    a(f's_add_u32 s{sTmp}, s{sTmp}, s{sOff}')
    srd_off(a, SD, 4, 5, sTmp, 'rem:1835008')
    a(f's_mul_i32 s{sTmp}, s{sRr}, 224')
    a(f's_add_u32 s{sTmp}, s{sTmp}, {WS_PG}')
    srd_off(a, SPG, 6, 7, sTmp, 15 * 7168 + 224)
    a(f's_lshl_b32 s{sTmp}, s{sRr}, 11')
    a(f's_lshl_b32 s{sOff}, s{sCc}, 8')
    a(f's_add_u32 s{sTmp}, s{sTmp}, s{sOff}')
    a(f's_add_u32 s{sTmp}, s{sTmp}, {WS_PD}')
    srd_off(a, SPD, 6, 7, sTmp, 256)
    a(f'v_min_u32 v{vT}, 55, v0')
    a(f'v_lshlrev_b32 v{vT}, 2, v{vT}')
    for k in range(16):
        a(f's_mov_b32 s{sOff}, {k*7168}')
        a(f'buffer_load_dword v{vPG+k}, v{vT}, s[{SPG}:{SPG+3}], s{sOff} offen')
    a(f'v_lshrrev_b32 v{vT}, 3, v0')
    a(f'v_lshlrev_b32 v{vT}, 10, v{vT}')
    a(f'v_and_b32 v{vT1}, 7, v0')
    a(f'v_lshl_add_u32 v{vT}, v{vT1}, 4, v{vT}')
    for i in range(7):
        a(f's_mov_b32 s{sOff}, {i*8192}')
        a(f'buffer_load_dwordx4 v[{vWd+4*i}:{vWd+4*i+3}], v{vT}, s[{SD}:{SD+3}], s{sOff} offen')
    a('s_waitcnt vmcnt(7)')
    vG, vU = 5, 6
    a(f'v_add_f32 v{vG}, v{vPG}, v{vPG+2}')
    a(f'v_add_f32 v{vU}, v{vPG+1}, v{vPG+3}')
    for r in range(2, 8):
        a(f'v_add_f32 v{vG}, v{vG}, v{vPG+2*r}')
        a(f'v_add_f32 v{vU}, v{vU}, v{vPG+2*r+1}')
    rnd(a, vG, vT)
    rnd(a, vU, vT)
    gelu_mul(a, vG, vU, vT, vT1, vT2)
    a(f'v_lshlrev_b32 v{vT}, 2, v0')
    a(f'ds_write_b32 v{vT}, v{vG} offset:{LDS_A}')
    a(f'v_lshrrev_b32 v{vT}, 3, v0')
    a(f'v_lshlrev_b32 v{vT}, 2, v{vT}')
    a('s_waitcnt lgkmcnt(0)')
    for i in range(7):
        a(f'ds_read_b32 v{vAct+i}, v{vT} offset:{LDS_A + 32*i}')
    a('s_waitcnt vmcnt(0) lgkmcnt(0)')
    unpack_fma(a, vWd, 7, vAct, vAcc, vT1, vT2)
    a('s_nop 1')
    for j in range(8):
        a(f'v_add_f32_dpp v{vAcc+j}, v{vAcc+j}, v{vAcc+j} row_ror:8 {DPPM}')
    a(f'v_lshrrev_b32 v{vT}, 4, v0')
    a(f'v_lshlrev_b32 v{vT}, 8, v{vT}')
    a(f'v_and_b32 v{vT1}, 7, v0')
    a(f'v_lshl_add_u32 v{vT}, v{vT1}, 5, v{vT}')
    a('s_mov_b32 s30, 0x00ff00ff')
    a('s_mov_b32 s31, 0x00ff00ff')
    a('s_mov_b64 exec, s[30:31]')
    a(f'ds_write_b128 v{vT}, v[{vAcc}:{vAcc+3}] offset:{LDS_P}')
    a(f'ds_write_b128 v{vT}, v[{vAcc+4}:{vAcc+7}] offset:{LDS_P+16}')
    a('s_mov_b64 exec, -1')
    a(f'v_lshlrev_b32 v{vT}, 2, v0')
    a('s_waitcnt lgkmcnt(0)')
    for i in range(4):
        a(f'ds_read_b32 v{vPG+i}, v{vT} offset:{LDS_P + 256*i}')
    a('s_waitcnt lgkmcnt(0)')
    a(f'v_add_f32 v{vT1}, v{vPG}, v{vPG+1}')
    a(f'v_add_f32 v{vT2}, v{vPG+2}, v{vPG+3}')
    a(f'v_add_f32 v{vT1}, v{vT1}, v{vT2}')
    a(f'buffer_store_dword v{vT1}, v{vT}, s[{SPD}:{SPD+3}], 0 offen')
    a.label('D_done')
    a('s_endpgm')
    return 68


def gen_final(a):
    vT, vT1, vT2 = 2, 3, 4
    vP = 8
    SPD, SH, SO = 16, 20, 24
    sTmp, sOff = 28, 29
    a.label('final_kernel')
    a('s_cmp_ge_u32 s2, 8')
    a('s_cbranch_scc1 F_done')
    a('s_load_dwordx2 s[4:5], s[0:1], 72')
    a('s_load_dwordx2 s[6:7], s[0:1], 88')
    a('s_waitcnt lgkmcnt(0)')
    a(f's_lshl_b32 s{sTmp}, s2, 8')
    a(f's_add_u32 s{sTmp}, s{sTmp}, {WS_PD}')
    srd_off(a, SPD, 6, 7, sTmp, 31 * 2048 + 256)
    a(f's_lshl_b32 s{sTmp}, s2, 8')
    a(f's_add_u32 s{sTmp}, s{sTmp}, {WS_H}')
    srd_off(a, SH, 6, 7, sTmp, 256)
    a(f's_lshl_b32 s{sTmp}, s2, 7')
    srd_off(a, SO, 4, 5, sTmp, 128)
    a(f'v_lshlrev_b32 v{vT}, 2, v0')
    a(f'buffer_load_dword v{vT2}, v{vT}, s[{SH}:{SH+3}], 0 offen')
    for r in range(32):
        if r % 2 == 0:
            a(f's_mov_b32 s{sOff}, {r*2048}')
        a(f'buffer_load_dword v{vP+r}, v{vT}, s[{SPD}:{SPD+3}], s{sOff} offen offset:{(r%2)*2048}')
    a('s_waitcnt vmcnt(0)')
    a(f'v_add_f32 v{vT1}, v{vP}, v{vP+1}')
    for r in range(2, 32):
        a(f'v_add_f32 v{vT1}, v{vT1}, v{vP+r}')
    rnd(a, vT1, vT)
    a(f'v_add_f32 v{vT1}, v{vT2}, v{vT1}')
    a(f'v_cvt_pk_bf16_f32 v{vT1}, v{vT1}, v{vT1}')
    a(f'v_lshlrev_b32 v{vT}, 1, v0')
    a(f'buffer_store_short v{vT1}, v{vT}, s[{SO}:{SO+3}], 0 offen')
    a.label('F_done')
    a('s_endpgm')
    return 40


def build(W=16, G=4, NT=' nt'):
    hdr = open('cdna_kernels/%s.s.ref' % NAME).read().split('\n')
    cm = [l for l in hdr if l.startswith(';') and '@launch' not in l and 'Override launch' not in l and 'grid=ceil' not in l]
    out = []
    out += cm
    out.append('; @launch kernel=attn_kernel grid=(256,1,1) block=(1024,1,1) lds=%d' % A_LDS_SIZE)
    out.append('; @launch kernel=wo_kernel grid=(256,1,1) block=(256,1,1) lds=4608')
    out.append('; @launch kernel=geglu_kernel grid=(224,1,1) block=(256,1,1) lds=10304')
    out.append('; @launch kernel=down_kernel grid=(256,1,1) block=(64,1,1) lds=1280')
    out.append('; @launch kernel=final_kernel grid=(8,1,1) block=(64,1,1) lds=0')
    out.append('.amdgcn_target "amdgcn-amd-amdhsa--gfx950"')
    out.append('.text')
    descs = []
    for name, fn in (('attn_kernel', lambda a: gen_attn(a, W, G, NT)), ('wo_kernel', gen_wo),
                     ('geglu_kernel', gen_geglu), ('down_kernel', gen_down), ('final_kernel', gen_final)):
        a = Asm()
        a.raw(f'.globl {name}')
        a.raw('.p2align 8')
        a.raw(f'.type {name},@function')
        nv = fn(a)
        out.append(a.text())
        descs.append(kernel_desc(name, nv))
    out.append('.section .rodata,"a"')
    for d in descs:
        out.append('.p2align 6')
        out.append(d)
    return '\n'.join(out)


if __name__ == '__main__':
    txt = build()
    probs = check_hazards(txt)
    path = sys.argv[1] if len(sys.argv) > 1 else 'cdna_kernels/%s.s' % NAME
    open(path, 'w').write(txt)
    print('written', path, 'hazards:', len(probs))
```

```python
import sys
from asmlib import Asm, check_hazards

import os
TNT = (' ' + os.environ.get('TPOL', 'nt')).rstrip()
NAME = 'sequential_preLN__mha_block_cached__geglu_ffn__decode'

WS_PART = 0x0
WS_PW = 0x100000
WS_H = 0x200000
WS_ACT = 0x201000

LOG2E = 0x3fb8aa3b
SCALE = 0x3db504f3
EPS = 0x3727c5ac
INV512 = 0x3b000000

DPPM = 'row_mask:0xf bank_mask:0xf'


def rnd(a, reg, tmp):
    a(f'v_cvt_pk_bf16_f32 v{tmp}, v{reg}, v{reg}')
    a(f'v_lshlrev_b32 v{reg}, 16, v{tmp}')


def row_allreduce(a, op, reg, rors=(8, 4, 2, 1)):
    for r in rors:
        a('s_nop 1')
        a(f'{op}_dpp v{reg}, v{reg}, v{reg} row_ror:{r} {DPPM}')


def wave_allreduce_sum(a, reg, s0):
    row_allreduce(a, 'v_add_f32', reg)
    a('s_nop 0')
    for i in range(4):
        a(f'v_readlane_b32 s{s0+i}, v{reg}, {16*i}')
    a('s_nop 1')
    a(f'v_mov_b32 v{reg}, s{s0}')
    for i in range(1, 4):
        a(f'v_add_f32 v{reg}, s{s0+i}, v{reg}')


def srd(a, s, lo, hi, size):
    a(f's_mov_b32 s{s}, s{lo}')
    a(f's_mov_b32 s{s+1}, s{hi}')
    a(f's_mov_b32 s{s+2}, {size}')
    a(f's_mov_b32 s{s+3}, 0x00020000')


def srd_off(a, s, lo, hi, soff, size):
    a(f's_add_u32 s{s}, s{lo}, s{soff}')
    a(f's_addc_u32 s{s+1}, s{hi}, 0')
    if isinstance(size, str):
        tot = int(size.split(':')[1])
        a(f's_sub_u32 s{s+2}, {tot}, s{soff}')
    else:
        a(f's_mov_b32 s{s+2}, {size}')
    a(f's_mov_b32 s{s+3}, 0x00020000')


def kernel_desc(name, vgpr, sgpr=102, extra=''):
    acc = ((vgpr + 3) // 4) * 4
    return f'''.amdhsa_kernel {name}
  .amdhsa_next_free_vgpr {vgpr}
  .amdhsa_next_free_sgpr {sgpr}
  .amdhsa_accum_offset {acc}
  .amdhsa_group_segment_fixed_size 0
  .amdhsa_kernarg_size 96
  .amdhsa_user_sgpr_count 2
  .amdhsa_user_sgpr_kernarg_segment_ptr 1
  .amdhsa_system_sgpr_workgroup_id_x 1
{extra}.end_amdhsa_kernel
'''

A_LDS_XN = 0
A_LDS_Q = 2048
A_LDS_ML = 2304
A_LDS_QP = 4096
A_LDS_O = 4096
A_LDS_SIZE = 4096 + 32768


def gen_attn(a, W=16, G=4, NT=' nt', MAP='contig', PREF=False):
    vTid, vL16, vLane, vT = 0, 1, 2, 3
    vX = 4
    vQ = 12
    vAcc = 16
    vM, vL, vT1, vT2 = 24, 25, 26, 27
    vS = 28
    vWin = 60
    nv = vWin + 4 * W
    sW, sH, sC = 14, 15, 3
    SX, SWQ, SK, SV, SWS = 16, 20, 24, 28, 32
    sOff, sTmp, sLog2e = 36, 38, 39
    sR = 40

    a.label('attn_kernel')
    a('s_cmp_ge_u32 s2, 256')
    a('s_cbranch_scc1 A_done')
    a('s_load_dwordx4 s[4:7], s[0:1], 0')
    a('s_load_dwordx4 s[8:11], s[0:1], 16')
    a('s_load_dwordx2 s[12:13], s[0:1], 88')
    a(f'v_and_b32 v{vLane}, 63, v0')
    a(f'v_lshrrev_b32 v{vT}, 6, v0')
    a('s_nop 0')
    a(f'v_readfirstlane_b32 s{sW}, v{vT}')
    a(f's_and_b32 s{sH}, s2, 31')
    a(f's_lshr_b32 s{sC}, s2, 5')
    a(f'v_lshlrev_b32 v{vL16}, 4, v{vLane}')
    a(f's_mov_b32 s{sLog2e}, {LOG2E:#x}')
    a('s_waitcnt lgkmcnt(0)')
    srd(a, SX, 4, 5, 1024)
    a(f's_lshl_b32 s{sTmp}, s{sH}, 8')
    srd_off(a, SWQ, 10, 11, sTmp, 'rem:4194304')
    a(f's_lshl_b32 s{sTmp}, s{sH}, 22')
    a(f's_lshl_b32 s{sOff}, s{sC}, 19')
    a(f's_add_u32 s{sTmp}, s{sTmp}, s{sOff}')
    if MAP == 'rot':
        a(f's_and_b32 s54, s{sW}, 7')
        a('s_lshl_b32 s54, s54, 12')
    if MAP in ('contig', 'rot'):
        a(f's_lshl_b32 s{sOff}, s{sW}, 15')
        a(f's_add_u32 s{sTmp}, s{sTmp}, s{sOff}')
        srd_off(a, SK, 6, 7, sTmp, 32768)
        srd_off(a, SV, 8, 9, sTmp, 32768)
    else:
        a(f's_lshl_b32 s{sOff}, s{sW}, 10')
        a(f's_add_u32 s{sTmp}, s{sTmp}, s{sOff}')
        a(f's_sub_u32 s{sOff}, 0x80000, s{sOff}')
        for S_, lo in ((SK, 6), (SV, 8)):
            a(f's_add_u32 s{S_}, s{lo}, s{sTmp}')
            a(f's_addc_u32 s{S_+1}, s{lo+1}, 0')
            a(f's_mov_b32 s{S_+2}, s{sOff}')
            a(f's_mov_b32 s{S_+3}, 0x00020000')
    a(f's_lshl_b32 s{sTmp}, s{sH}, 3')
    a(f's_add_u32 s{sTmp}, s{sTmp}, s{sC}')
    a(f's_lshl_b32 s{sTmp}, s{sTmp}, 10')
    a(f's_add_u32 s{sTmp}, s{sTmp}, {WS_PART}')
    srd_off(a, SWS, 12, 13, sTmp, 1024)

    a(f'buffer_load_dwordx4 v[{vX}:{vX+3}], v{vL16}, s[{SX}:{SX+3}], 0 offen')
    a(f'v_lshrrev_b32 v{vT}, 4, v{vLane}')
    a(f'v_lshlrev_b32 v{vT}, 13, v{vT}')
    a(f'v_and_b32 v{vT1}, 15, v{vLane}')
    a(f'v_lshl_add_u32 v{vT}, v{vT1}, 4, v{vT}')
    a(f's_lshl_b32 s{sOff}, s{sW}, 18')
    for i in range(8):
        a(f'buffer_load_dwordx4 v[{vS+4*i}:{vS+4*i+3}], v{vT}, s[{SWQ}:{SWQ+3}], s{sOff} offen')
        if i < 7:
            a(f's_add_u32 s{sOff}, s{sOff}, 0x8000')

    def issue(i):
        slot = i % W
        t = i % 32
        srdn = SK if i < 32 else SV
        if MAP in ('contig', 'rot'):
            if t % 4 == 0:
                if MAP == 'rot':
                    a(f's_add_u32 s{sOff}, s54, {(t // 4) * 4096}')
                    a(f's_and_b32 s{sOff}, s{sOff}, 0x7fff')
                else:
                    a(f's_mov_b32 s{sOff}, {(t // 4) * 4096}')
            a(f'buffer_load_dwordx4 v[{vWin+4*slot}:{vWin+4*slot+3}], v{vL16}, s[{srdn}:{srdn+3}], s{sOff} offen offset:{(t % 4) * 1024}{NT}')
        else:
            a(f's_mov_b32 s{sOff}, {t * 16384}')
            a(f'buffer_load_dwordx4 v[{vWin+4*slot}:{vWin+4*slot+3}], v{vL16}, s[{srdn}:{srdn+3}], s{sOff} offen{NT}')

    for i in range(W):
        issue(i)

    vF = vAcc
    a(f's_waitcnt vmcnt({8 + W})')
    for j in range(4):
        a(f'v_lshlrev_b32 v{vF+2*j}, 16, v{vX+j}')
        a(f'v_and_b32 v{vF+2*j+1}, 0xffff0000, v{vX+j}')
    a(f'v_add_f32 v{vT}, v{vF}, v{vF+1}')
    a(f'v_add_f32 v{vT1}, v{vF+2}, v{vF+3}')
    a(f'v_add_f32 v{vT2}, v{vF+4}, v{vF+5}')
    a(f'v_add_f32 v{vM}, v{vF+6}, v{vF+7}')
    a(f'v_add_f32 v{vT}, v{vT}, v{vT1}')
    a(f'v_add_f32 v{vT2}, v{vT2}, v{vM}')
    a(f'v_add_f32 v{vT}, v{vT}, v{vT2}')
    wave_allreduce_sum(a, vT, sR)
    vMean = vM
    a(f'v_mul_f32 v{vMean}, {INV512:#x}, v{vT}')
    vCn = vX
    for e in range(8):
        a(f'v_sub_f32 v{vCn+e}, v{vF+e}, v{vMean}')
    a(f'v_mul_f32 v{vT}, v{vCn}, v{vCn}')
    for e in range(1, 8):
        a(f'v_fmac_f32 v{vT}, v{vCn+e}, v{vCn+e}')
    wave_allreduce_sum(a, vT, sR)
    a(f'v_mul_f32 v{vT}, {INV512:#x}, v{vT}')
    rnd(a, vMean, vT1)
    rnd(a, vT, vT1)
    a(f'v_add_f32 v{vT}, {EPS:#x}, v{vT}')
    rnd(a, vT, vT1)
    a(f'v_sqrt_f32 v{vT1}, v{vT}')
    a('s_nop 0')
    a(f'v_fma_f32 v{vT2}, -v{vT1}, v{vT1}, v{vT}')
    a(f'v_rcp_f32 v{vL}, v{vT1}')
    a('s_nop 0')
    a(f'v_mul_f32 v{vL}, 0.5, v{vL}')
    a(f'v_fma_f32 v{vT1}, v{vT2}, v{vL}, v{vT1}')
    rnd(a, vT1, vT2)
    a(f'v_rcp_f32 v{vL}, v{vT1}')
    for e in range(8):
        a(f'v_sub_f32 v{vCn+e}, v{vF+e}, v{vMean}')
    for e in range(8):
        rnd(a, vCn + e, vT2)
    for e in range(8):
        a(f'v_mul_f32 v{vF+e}, v{vCn+e}, v{vL}')
        a(f'v_fma_f32 v{vT2}, -v{vF+e}, v{vT1}, v{vCn+e}')
        a(f'v_fma_f32 v{vF+e}, v{vT2}, v{vL}, v{vF+e}')
        rnd(a, vF + e, vT2)
    a(f'v_lshlrev_b32 v{vT}, 5, v{vLane}')
    a(f'ds_write_b128 v{vT}, v[{vF}:{vF+3}] offset:{A_LDS_XN}')
    a(f'ds_write_b128 v{vT}, v[{vF+4}:{vF+7}] offset:{A_LDS_XN+16}')
    a(f'v_lshrrev_b32 v{vT1}, 4, v{vLane}')
    a(f'v_lshlrev_b32 v{vT1}, 2, v{vT1}')
    a(f's_lshl_b32 s{sTmp}, s{sW}, 7')
    a(f'v_add_u32 v{vT1}, s{sTmp}, v{vT1}')
    a('s_waitcnt lgkmcnt(0)')
    for i in range(8):
        a(f'ds_read_b32 v{vX+i}, v{vT1} offset:{A_LDS_XN + 16*i}')
    a(f's_waitcnt vmcnt({W}) lgkmcnt(0)')
    for i in range(8):
        for j in range(4):
            wr = vS + 4 * i + j
            a(f'v_lshlrev_b32 v{vT1}, 16, v{wr}')
            a(f'v_and_b32 v{vT2}, 0xffff0000, v{wr}')
            if i == 0:
                a(f'v_mul_f32 v{vAcc+2*j}, v{vX+i}, v{vT1}')
                a(f'v_mul_f32 v{vAcc+2*j+1}, v{vX+i}, v{vT2}')
            else:
                a(f'v_fmac_f32 v{vAcc+2*j}, v{vX+i}, v{vT1}')
                a(f'v_fmac_f32 v{vAcc+2*j+1}, v{vX+i}, v{vT2}')
    a(f's_lshl_b32 s{sTmp}, s{sW}, 11')
    a(f'v_add_u32 v{vT}, s{sTmp}, v{vT}')
    a(f'ds_write_b128 v{vT}, v[{vAcc}:{vAcc+3}] offset:{A_LDS_QP}')
    a(f'ds_write_b128 v{vT}, v[{vAcc+4}:{vAcc+7}] offset:{A_LDS_QP+16}')
    a('s_waitcnt lgkmcnt(0)')
    a('s_barrier')
    a(f's_cmp_ge_u32 s{sW}, 2')
    a('s_cbranch_scc1 A_qdone')
    a(f'v_lshlrev_b32 v{vT}, 2, v0')
    vR = vS
    for b in range(2):
        for i in range(32):
            a(f'ds_read_b32 v{vR+i}, v{vT} offset:{A_LDS_QP + (b*32+i)*512}')
        a('s_waitcnt lgkmcnt(0)')
        for i in range(32):
            if b == 0 and i == 0:
                continue
            if b == 0 and i == 1:
                a(f'v_add_f32 v{vT1}, v{vR}, v{vR+1}')
            else:
                a(f'v_add_f32 v{vT1}, v{vT1}, v{vR+i}')
    a(f'v_cvt_pk_bf16_f32 v{vT1}, v{vT1}, v{vT1}')
    a(f'v_lshlrev_b32 v{vT2}, 1, v0')
    a(f'ds_write_b16 v{vT2}, v{vT1} offset:{A_LDS_Q}')
    a('s_waitcnt lgkmcnt(0)')
    a.label('A_qdone')
    a('s_barrier')
    a(f'v_and_b32 v{vT}, 15, v{vLane}')
    a(f'v_lshlrev_b32 v{vT}, 4, v{vT}')
    a(f'ds_read_b128 v[{vQ}:{vQ+3}], v{vT} offset:{A_LDS_Q}')
    a('s_waitcnt lgkmcnt(0)')

    def wait_for(g):
        outstanding = min(W, 64 - g)
        a(f's_waitcnt vmcnt({max(0, outstanding - G)})')

    for g in range(0, 32, G):
        wait_for(g)
        tiles = list(range(g, g + G))
        for j in range(4):
            for t in tiles:
                kr = vWin + 4 * (t % W) + j
                if j == 0:
                    a(f'v_dot2_f32_bf16 v{vS+t}, v{kr}, v{vQ+j}, 0')
                else:
                    a(f'v_dot2_f32_bf16 v{vS+t}, v{kr}, v{vQ+j}, v{vS+t}')
        for i in range(g + W, g + W + G):
            if i < 64:
                issue(i)
        for r in (8, 4, 2, 1):
            for t in tiles:
                a(f'v_add_f32_dpp v{vS+t}, v{vS+t}, v{vS+t} row_ror:{r} {DPPM}')
        for t in range(g, g + G, 2):
            sa, sb = vS + t, vS + t + 1
            a(f'v_cvt_pk_bf16_f32 v{vT}, v{sa}, v{sb}')
            a(f'v_lshlrev_b32 v{sa}, 16, v{vT}')
            a(f'v_and_b32 v{sb}, 0xffff0000, v{vT}')
            a(f'v_mul_f32 v{sa}, {SCALE:#x}, v{sa}')
            a(f'v_mul_f32 v{sb}, {SCALE:#x}, v{sb}')
            a(f'v_cvt_pk_bf16_f32 v{vT}, v{sa}, v{sb}')
            a(f'v_lshlrev_b32 v{sa}, 16, v{vT}')
            a(f'v_and_b32 v{sb}, 0xffff0000, v{vT}')
    a(f'v_max3_f32 v{vM}, v{vS}, v{vS+1}, v{vS+2}')
    for t in range(3, 31, 2):
        a(f'v_max3_f32 v{vM}, v{vM}, v{vS+t}, v{vS+t+1}')
    a(f'v_max_f32 v{vM}, v{vM}, v{vS+31}')
    a(f'v_mul_f32 v{vM}, s{sLog2e}, v{vM}')
    for t in range(32):
        a(f'v_fma_f32 v{vS+t}, v{vS+t}, s{sLog2e}, -v{vM}')
    for t in range(32):
        a(f'v_exp_f32 v{vS+t}, v{vS+t}')
    a(f'v_add_f32 v{vL}, v{vS}, v{vS+1}')
    for t in range(2, 32):
        a(f'v_add_f32 v{vL}, v{vL}, v{vS+t}')
    for g in range(32, 64, G):
        wait_for(g)
        for t in range(g, g + G):
            tt = t - 32
            for j in range(4):
                vr = vWin + 4 * (t % W) + j
                a(f'v_lshlrev_b32 v{vT1}, 16, v{vr}')
                a(f'v_and_b32 v{vT2}, 0xffff0000, v{vr}')
                if tt == 0:
                    a(f'v_mul_f32 v{vAcc+2*j}, v{vS+tt}, v{vT1}')
                    a(f'v_mul_f32 v{vAcc+2*j+1}, v{vS+tt}, v{vT2}')
                else:
                    a(f'v_fmac_f32 v{vAcc+2*j}, v{vS+tt}, v{vT1}')
                    a(f'v_fmac_f32 v{vAcc+2*j+1}, v{vS+tt}, v{vT2}')
        for i in range(g + W, g + W + G):
            if i < 64:
                issue(i)
    if PREF:
        a('s_load_dwordx2 s[46:47], s[0:1], 32')
        a('s_load_dwordx4 s[48:51], s[0:1], 48')
        a('s_load_dwordx2 s[52:53], s[0:1], 64')
        a(f's_lshl_b32 s{sTmp}, s2, 14')
        a(f's_lshl_b32 s{sOff}, s{sW}, 10')
        a(f's_add_u32 s{sTmp}, s{sTmp}, s{sOff}')
        a('s_waitcnt lgkmcnt(0)')
        srd_off(a, 56, 46, 47, sTmp, 'rem:4194304')
        a(f'buffer_load_dwordx4 v[{vWin+4*W-4}:{vWin+4*W-1}], v{vL16}, s[56:59], 0 offen')
        a(f's_cmp_ge_u32 s{sW}, 7')
        a('s_cbranch_scc1 A_nopref')
        a(f's_mul_i32 s{sTmp}, s2, 7168')
        a(f's_add_u32 s{sTmp}, s{sTmp}, s{sOff}')
        srd_off(a, 60, 48, 49, sTmp, 'rem:1835008')
        srd_off(a, 64, 50, 51, sTmp, 'rem:1835008')
        srd_off(a, 68, 52, 53, sTmp, 'rem:1835008')
        a(f'buffer_load_dwordx4 v[{vWin+4*W-8}:{vWin+4*W-5}], v{vL16}, s[60:63], 0 offen')
        a(f'buffer_load_dwordx4 v[{vWin+4*W-12}:{vWin+4*W-9}], v{vL16}, s[64:67], 0 offen')
        a(f'buffer_load_dwordx4 v[{vWin+4*W-16}:{vWin+4*W-13}], v{vL16}, s[68:71], 0 offen')
        a.label('A_nopref')
    a(f'v_mov_b32 v{vT}, v{vM}')
    a(f'v_mov_b32 v{vT1}, v{vM}')
    a('s_nop 1')
    a(f'v_permlane32_swap_b32 v{vT}, v{vT1}')
    a('s_nop 1')
    a(f'v_max_f32 v{vT}, v{vT}, v{vT1}')
    a(f'v_mov_b32 v{vT1}, v{vT}')
    a('s_nop 1')
    a(f'v_permlane16_swap_b32 v{vT}, v{vT1}')
    a('s_nop 1')
    a(f'v_max_f32 v{vT}, v{vT}, v{vT1}')
    a(f'v_sub_f32 v{vT2}, v{vM}, v{vT}')
    a(f'v_exp_f32 v{vT2}, v{vT2}')
    a('s_nop 0')
    regs = [vAcc + j for j in range(8)] + [vL]
    for r in regs:
        a(f'v_mul_f32 v{r}, v{vT2}, v{r}')
    tmp = [vS + j for j in range(9)]
    for swap in ('v_permlane32_swap_b32', 'v_permlane16_swap_b32'):
        for r, tm in zip(regs, tmp):
            a(f'v_mov_b32 v{tm}, v{r}')
        a('s_nop 1')
        for r, tm in zip(regs, tmp):
            a(f'{swap} v{r}, v{tm}')
        a('s_nop 1')
        for r, tm in zip(regs, tmp):
            a(f'v_add_f32 v{r}, v{r}, v{tm}')
    a(f'v_mov_b32 v{vT1}, v{vL}')
    a(f'v_mov_b32 v{vT2}, v{vT1}')
    a(f'v_mov_b32 v{vT1}, v{vT}')
    a(f'v_lshlrev_b32 v{vT}, 5, v{vLane}')
    a(f's_lshl_b32 s{sTmp}, s{sW}, 9')
    a(f'v_add_u32 v{vT}, s{sTmp}, v{vT}')
    a('s_mov_b64 exec, 0xffff')
    a(f'ds_write_b128 v{vT}, v[{vAcc}:{vAcc+3}] offset:{A_LDS_O}')
    a(f'ds_write_b128 v{vT}, v[{vAcc+4}:{vAcc+7}] offset:{A_LDS_O+16}')
    a(f's_lshl_b32 s{sTmp}, s{sW}, 3')
    a(f'v_mov_b32 v{vT}, s{sTmp}')
    a(f'ds_write_b64 v{vT}, v[{vT1}:{vT2}] offset:{A_LDS_ML}')
    a('s_mov_b64 exec, -1')
    a('s_waitcnt lgkmcnt(0)')
    a('s_barrier')
    a(f's_cmp_ge_u32 s{sW}, 2')
    a('s_cbranch_scc1 A_done')
    vML = vS
    vO = vWin
    a(f'v_mov_b32 v{vT}, 0')
    for w in range(16):
        a(f'ds_read_b64 v[{vML+2*w}:{vML+2*w+1}], v{vT} offset:{A_LDS_ML + 8*w}')
    a(f'v_lshlrev_b32 v{vT}, 2, v0')
    for w in range(16):
        a(f'ds_read_b32 v{vO+w}, v{vT} offset:{A_LDS_O + 512*w}')
    a('s_waitcnt lgkmcnt(0)')
    a(f'v_max3_f32 v{vM}, v{vML}, v{vML+2}, v{vML+4}')
    for w in range(3, 15, 2):
        a(f'v_max3_f32 v{vM}, v{vM}, v{vML+2*w}, v{vML+2*w+2}')
    a(f'v_max_f32 v{vM}, v{vM}, v{vML+30}')
    for w in range(16):
        a(f'v_sub_f32 v{vML+2*w}, v{vML+2*w}, v{vM}')
    for w in range(16):
        a(f'v_exp_f32 v{vML+2*w}, v{vML+2*w}')
    a('s_nop 0')
    a(f'v_mul_f32 v{vL}, v{vML}, v{vML+1}')
    a(f'v_mul_f32 v{vAcc}, v{vML}, v{vO}')
    for w in range(1, 16):
        a(f'v_fmac_f32 v{vL}, v{vML+2*w}, v{vML+2*w+1}')
        a(f'v_fmac_f32 v{vAcc}, v{vML+2*w}, v{vO+w}')
    a(f'buffer_store_dword v{vAcc}, v{vT}, s[{SWS}:{SWS+3}], 0 offen')
    a(f'v_mov_b32 v{vT1}, v{vM}')
    a(f'v_mov_b32 v{vT2}, v{vL}')
    a(f'v_mov_b32 v{vT}, 512')
    a('s_mov_b64 exec, 1')
    a(f'buffer_store_dwordx2 v[{vT1}:{vT2}], v{vT}, s[{SWS}:{SWS+3}], 0 offen')
    a('s_mov_b64 exec, -1')
    a.label('A_done')
    a('s_endpgm')
    return nv


WS_PG = 0x300000
WS_PD = 0x400000


def unpack_fma(a, vw, nload, vmul, vacc, vT1, vT2):
    for i in range(nload):
        for j in range(4):
            wr = vw + 4 * i + j
            a(f'v_lshlrev_b32 v{vT1}, 16, v{wr}')
            a(f'v_and_b32 v{vT2}, 0xffff0000, v{wr}')
            if i == 0:
                a(f'v_mul_f32 v{vacc+2*j}, v{vmul+i}, v{vT1}')
                a(f'v_mul_f32 v{vacc+2*j+1}, v{vmul+i}, v{vT2}')
            else:
                a(f'v_fmac_f32 v{vacc+2*j}, v{vmul+i}, v{vT1}')
                a(f'v_fmac_f32 v{vacc+2*j+1}, v{vmul+i}, v{vT2}')


def gen_wo(a):
    vLane, vT, vT1, vT2 = 1, 2, 3, 4
    vWt = 8
    vOp = 24
    vMLp = 32
    vAcc = 48
    vOr = 56
    sW, sH, sCc = 14, 15, 3
    SWO, SP, SPW = 16, 20, 24
    sTmp, sOff = 28, 29
    LDS_O = 0; LDS_P = 512
    a.label('wo_kernel')
    a('s_cmp_ge_u32 s2, 256')
    a('s_cbranch_scc1 W_done')
    a('s_load_dwordx2 s[4:5], s[0:1], 32')
    a('s_load_dwordx2 s[6:7], s[0:1], 88')
    a(f'v_and_b32 v{vLane}, 63, v0')
    a(f'v_lshrrev_b32 v{vT}, 6, v0')
    a('s_nop 0')
    a(f'v_readfirstlane_b32 s{sW}, v{vT}')
    a(f's_lshr_b32 s{sH}, s2, 3')
    a(f's_and_b32 s{sCc}, s2, 7')
    a('s_waitcnt lgkmcnt(0)')
    a(f's_lshl_b32 s{sTmp}, s{sH}, 17')
    a(f's_lshl_b32 s{sOff}, s{sCc}, 7')
    a(f's_add_u32 s{sTmp}, s{sTmp}, s{sOff}')
    srd_off(a, SWO, 4, 5, sTmp, 'rem:4194304')
    a(f's_lshl_b32 s{sTmp}, s{sH}, 13')
    a(f's_add_u32 s{sTmp}, s{sTmp}, {WS_PART}')
    srd_off(a, SP, 6, 7, sTmp, 8192)
    a(f's_lshl_b32 s{sTmp}, s{sH}, 11')
    a(f's_lshl_b32 s{sOff}, s{sCc}, 8')
    a(f's_add_u32 s{sTmp}, s{sTmp}, s{sOff}')
    a(f's_add_u32 s{sTmp}, s{sTmp}, {WS_PW}')
    srd_off(a, SPW, 6, 7, sTmp, 256)
    a(f'v_and_b32 v{vT1}, 127, v0')
    a(f'v_lshlrev_b32 v{vT1}, 2, v{vT1}')
    a(f'v_mov_b32 v{vT2}, 512')
    a(f's_mov_b32 s{sOff}, 4096')
    for c8 in range(8):
        so = '0' if c8 < 4 else f's{sOff}'
        a(f'buffer_load_dword v{vOp+c8}, v{vT1}, s[{SP}:{SP+3}], {so} offen offset:{(c8%4)*1024}')
    for c8 in range(8):
        so = '0' if c8 < 4 else f's{sOff}'
        a(f'buffer_load_dwordx2 v[{vMLp+2*c8}:{vMLp+2*c8+1}], v{vT2}, s[{SP}:{SP+3}], {so} offen offset:{(c8%4)*1024}')
    a(f'v_lshrrev_b32 v{vT}, 3, v{vLane}')
    a(f'v_lshlrev_b32 v{vT}, 10, v{vT}')
    a(f'v_and_b32 v{vT1}, 7, v{vLane}')
    a(f'v_lshl_add_u32 v{vT}, v{vT1}, 4, v{vT}')
    a(f's_lshl_b32 s{sOff}, s{sW}, 15')
    for i in range(4):
        a(f'buffer_load_dwordx4 v[{vWt+4*i}:{vWt+4*i+3}], v{vT}, s[{SWO}:{SWO+3}], s{sOff} offen{TNT}')
        if i < 3:
            a(f's_add_u32 s{sOff}, s{sOff}, 0x2000')
    a('s_waitcnt vmcnt(4)')
    a(f'v_max3_f32 v{vT}, v{vMLp}, v{vMLp+2}, v{vMLp+4}')
    a(f'v_max3_f32 v{vT}, v{vT}, v{vMLp+6}, v{vMLp+8}')
    a(f'v_max3_f32 v{vT}, v{vT}, v{vMLp+10}, v{vMLp+12}')
    a(f'v_max_f32 v{vT}, v{vT}, v{vMLp+14}')
    for c8 in range(8):
        a(f'v_sub_f32 v{vMLp+2*c8}, v{vMLp+2*c8}, v{vT}')
    for c8 in range(8):
        a(f'v_exp_f32 v{vMLp+2*c8}, v{vMLp+2*c8}')
    a('s_nop 0')
    a(f'v_mul_f32 v{vT}, v{vMLp}, v{vMLp+1}')
    a(f'v_mul_f32 v{vT1}, v{vMLp}, v{vOp}')
    for c8 in range(1, 8):
        a(f'v_fmac_f32 v{vT}, v{vMLp+2*c8}, v{vMLp+2*c8+1}')
        a(f'v_fmac_f32 v{vT1}, v{vMLp+2*c8}, v{vOp+c8}')
    a(f'v_rcp_f32 v{vT2}, v{vT}')
    a('s_nop 0')
    a(f'v_mul_f32 v{vOp}, v{vT1}, v{vT2}')
    a(f'v_fma_f32 v{vOp+1}, -v{vOp}, v{vT}, v{vT1}')
    a(f'v_fma_f32 v{vOp}, v{vOp+1}, v{vT2}, v{vOp}')
    rnd(a, vOp, vT)
    a(f'v_and_b32 v{vT1}, 127, v0')
    a(f'v_lshlrev_b32 v{vT}, 2, v{vT1}')
    a(f'ds_write_b32 v{vT}, v{vOp} offset:{LDS_O}')
    a('s_waitcnt lgkmcnt(0)')
    a('s_barrier')
    a(f'v_lshrrev_b32 v{vT}, 3, v{vLane}')
    a(f'v_lshlrev_b32 v{vT}, 2, v{vT}')
    a(f's_lshl_b32 s{sTmp}, s{sW}, 7')
    a(f'v_add_u32 v{vT}, s{sTmp}, v{vT}')
    for i in range(4):
        a(f'ds_read_b32 v{vOr+i}, v{vT} offset:{LDS_O + 32*i}')
    a('s_waitcnt vmcnt(0) lgkmcnt(0)')
    unpack_fma(a, vWt, 4, vOr, vAcc, vT1, vT2)
    a('s_nop 1')
    for j in range(8):
        a(f'v_add_f32_dpp v{vAcc+j}, v{vAcc+j}, v{vAcc+j} row_ror:8 {DPPM}')
    a(f'v_lshrrev_b32 v{vT}, 4, v{vLane}')
    a(f'v_lshlrev_b32 v{vT}, 8, v{vT}')
    a(f'v_and_b32 v{vT1}, 7, v{vLane}')
    a(f'v_lshl_add_u32 v{vT}, v{vT1}, 5, v{vT}')
    a(f's_lshl_b32 s{sTmp}, s{sW}, 10')
    a(f'v_add_u32 v{vT}, s{sTmp}, v{vT}')
    a('s_mov_b32 s30, 0x00ff00ff')
    a('s_mov_b32 s31, 0x00ff00ff')
    a('s_mov_b64 exec, s[30:31]')
    a(f'ds_write_b128 v{vT}, v[{vAcc}:{vAcc+3}] offset:{LDS_P}')
    a(f'ds_write_b128 v{vT}, v[{vAcc+4}:{vAcc+7}] offset:{LDS_P+16}')
    a('s_mov_b64 exec, -1')
    a('s_waitcnt lgkmcnt(0)')
    a('s_barrier')
    a(f's_cmp_ge_u32 s{sW}, 1')
    a('s_cbranch_scc1 W_done')
    a(f'v_lshlrev_b32 v{vT}, 2, v0')
    for i in range(16):
        a(f'ds_read_b32 v{vMLp+i}, v{vT} offset:{LDS_P + 256*i}')
    a('s_waitcnt lgkmcnt(0)')
    a(f'v_add_f32 v{vT1}, v{vMLp}, v{vMLp+1}')
    for i in range(2, 16):
        a(f'v_add_f32 v{vT1}, v{vT1}, v{vMLp+i}')
    a(f'buffer_store_dword v{vT1}, v{vT}, s[{SPW}:{SPW+3}], 0 offen')
    a.label('W_done')
    a('s_endpgm')
    return 60


def gen_geglu(a):
    vLane, vT, vT1, vT2, vT3 = 1, 2, 3, 4, 5
    vH0, vH1 = 6, 7
    vPW = 8
    vWg = 72
    vWu = 80
    vHn = 88
    vAg = 92
    vAu = 100
    vMean, vVar = 8, 9
    sW, sRr, sCc = 14, 15, 3
    SG, SU, SPW, SX, SH, SPG = 16, 20, 24, 28, 32, 36
    sTmp, sOff, sR = 40, 41, 44
    LDS_R = 0
    LDS_HN = 64
    LDS_P = 64 + 2048
    a.label('geglu_kernel')
    a('s_cmp_ge_u32 s2, 224')
    a('s_cbranch_scc1 G_done')
    a('s_load_dwordx2 s[4:5], s[0:1], 0')
    a('s_load_dwordx4 s[8:11], s[0:1], 48')
    a('s_load_dwordx2 s[6:7], s[0:1], 88')
    a(f'v_and_b32 v{vLane}, 63, v0')
    a(f'v_lshrrev_b32 v{vT}, 6, v0')
    a('s_nop 0')
    a(f'v_readfirstlane_b32 s{sW}, v{vT}')
    a(f's_lshr_b32 s{sCc}, s2, 3')
    a(f's_and_b32 s{sRr}, s2, 7')
    a('s_waitcnt lgkmcnt(0)')
    a(f's_mul_i32 s{sTmp}, s{sRr}, {64*3584}')
    a(f's_lshl_b32 s{sOff}, s{sCc}, 7')
    a(f's_add_u32 s{sTmp}, s{sTmp}, s{sOff}')
    srd_off(a, SG, 8, 9, sTmp, 'rem:1835008')
    srd_off(a, SU, 10, 11, sTmp, 'rem:1835008')
    a(f's_mov_b32 s{sTmp}, {WS_PW}')
    srd_off(a, SPW, 6, 7, sTmp, 65536)
    srd(a, SX, 4, 5, 1024)
    a(f's_mov_b32 s{sTmp}, {WS_H}')
    srd_off(a, SH, 6, 7, sTmp, 2048)
    a(f's_mul_i32 s{sTmp}, s{sRr}, 14336')
    a(f's_lshl_b32 s{sOff}, s{sCc}, 8')
    a(f's_add_u32 s{sTmp}, s{sTmp}, s{sOff}')
    a(f's_add_u32 s{sTmp}, s{sTmp}, {WS_PG}')
    srd_off(a, SPG, 6, 7, sTmp, 7168 + 256)
    a(f'v_lshlrev_b32 v{vT}, 3, v0')
    for r in range(32):
        a(f'buffer_load_dwordx2 v[{vPW+2*r}:{vPW+2*r+1}], v{vT}, s[{SPW}:{SPW+3}], 0 offen offset:{(r%2)*2048}')
        if r % 2 == 1 and r < 31:
            a(f'v_add_u32 v{vT}, 4096, v{vT}')
    a(f'v_lshlrev_b32 v{vT1}, 2, v0')
    a(f'buffer_load_dword v{vT3}, v{vT1}, s[{SX}:{SX+3}], 0 offen')
    a(f'v_lshrrev_b32 v{vT}, 3, v{vLane}')
    a(f'v_mul_u32_u24 v{vT}, 3584, v{vT}')
    a(f'v_and_b32 v{vT1}, 7, v{vLane}')
    a(f'v_lshl_add_u32 v{vT}, v{vT1}, 4, v{vT}')
    a(f's_mul_i32 s{sOff}, s{sW}, {16*3584}')
    for i in range(2):
        a(f'buffer_load_dwordx4 v[{vWg+4*i}:{vWg+4*i+3}], v{vT}, s[{SG}:{SG+3}], s{sOff} offen{TNT}')
        a(f'buffer_load_dwordx4 v[{vWu+4*i}:{vWu+4*i+3}], v{vT}, s[{SU}:{SU+3}], s{sOff} offen{TNT}')
        if i < 1:
            a(f's_add_u32 s{sOff}, s{sOff}, {8*3584}')
    a('s_waitcnt vmcnt(4)')
    a(f'v_add_f32 v{vH0}, v{vPW}, v{vPW+2}')
    a(f'v_add_f32 v{vH1}, v{vPW+1}, v{vPW+3}')
    for r in range(2, 32):
        a(f'v_add_f32 v{vH0}, v{vH0}, v{vPW+2*r}')
        a(f'v_add_f32 v{vH1}, v{vH1}, v{vPW+2*r+1}')
    rnd(a, vH0, vT)
    rnd(a, vH1, vT)
    a(f'v_lshlrev_b32 v{vT1}, 16, v{vT3}')
    a(f'v_and_b32 v{vT2}, 0xffff0000, v{vT3}')
    a(f'v_add_f32 v{vH0}, v{vT1}, v{vH0}')
    a(f'v_add_f32 v{vH1}, v{vT2}, v{vH1}')
    rnd(a, vH0, vT)
    rnd(a, vH1, vT)
    a('s_cmp_lg_u32 s2, 0')
    a('s_cbranch_scc1 G_noh')
    a(f'v_lshlrev_b32 v{vT1}, 3, v0')
    a(f'buffer_store_dwordx2 v[{vH0}:{vH1}], v{vT1}, s[{SH}:{SH+3}], 0 offen')
    a.label('G_noh')
    a(f'v_add_f32 v{vT}, v{vH0}, v{vH1}')
    wave_allreduce_sum(a, vT, sR)
    a(f's_lshl_b32 s{sTmp}, s{sW}, 2')
    a(f'v_mov_b32 v{vT1}, s{sTmp}')
    a(f'ds_write_b32 v{vT1}, v{vT} offset:{LDS_R}')
    a('s_waitcnt lgkmcnt(0)')
    a('s_barrier')
    a(f'v_mov_b32 v{vT1}, 0')
    a(f'ds_read_b128 v[{vPW}:{vPW+3}], v{vT1} offset:{LDS_R}')
    a('s_waitcnt lgkmcnt(0)')
    a(f'v_add_f32 v{vT}, v{vPW}, v{vPW+1}')
    a(f'v_add_f32 v{vT1}, v{vPW+2}, v{vPW+3}')
    a(f'v_add_f32 v{vT}, v{vT}, v{vT1}')
    a(f'v_mul_f32 v{vMean}, {INV512:#x}, v{vT}')
    a(f'v_sub_f32 v{vT1}, v{vH0}, v{vMean}')
    a(f'v_sub_f32 v{vT2}, v{vH1}, v{vMean}')
    a(f'v_mul_f32 v{vT}, v{vT1}, v{vT1}')
    a(f'v_fmac_f32 v{vT}, v{vT2}, v{vT2}')
    wave_allreduce_sum(a, vT, sR)
    a(f'v_mov_b32 v{vT1}, s{sTmp}')
    a(f'ds_write_b32 v{vT1}, v{vT} offset:{LDS_R+16}')
    a('s_waitcnt lgkmcnt(0)')
    a('s_barrier')
    a(f'v_mov_b32 v{vT1}, 0')
    a(f'ds_read_b128 v[{vPW+4}:{vPW+7}], v{vT1} offset:{LDS_R+16}')
    a('s_waitcnt lgkmcnt(0)')
    a(f'v_add_f32 v{vT}, v{vPW+4}, v{vPW+5}')
    a(f'v_add_f32 v{vT1}, v{vPW+6}, v{vPW+7}')
    a(f'v_add_f32 v{vT}, v{vT}, v{vT1}')
    a(f'v_mul_f32 v{vVar}, {INV512:#x}, v{vT}')
    rnd(a, vMean, vT)
    rnd(a, vVar, vT)
    a(f'v_add_f32 v{vVar}, {EPS:#x}, v{vVar}')
    rnd(a, vVar, vT)
    a(f'v_sqrt_f32 v{vT1}, v{vVar}')
    a('s_nop 0')
    a(f'v_fma_f32 v{vT2}, -v{vT1}, v{vT1}, v{vVar}')
    a(f'v_rcp_f32 v{vT3}, v{vT1}')
    a('s_nop 0')
    a(f'v_mul_f32 v{vT3}, 0.5, v{vT3}')
    a(f'v_fma_f32 v{vT1}, v{vT2}, v{vT3}, v{vT1}')
    rnd(a, vT1, vT2)
    a(f'v_rcp_f32 v{vT3}, v{vT1}')
    for (h, o) in ((vH0, 10), (vH1, 11)):
        a(f'v_sub_f32 v{o}, v{h}, v{vMean}')
        rnd(a, o, vT2)
        a(f'v_mul_f32 v12, v{o}, v{vT3}')
        a(f'v_fma_f32 v13, -v12, v{vT1}, v{o}')
        a(f'v_fma_f32 v{o}, v13, v{vT3}, v12')
        rnd(a, o, vT2)
    a(f'v_lshlrev_b32 v{vT}, 3, v0')
    a(f'ds_write_b64 v{vT}, v[10:11] offset:{LDS_HN}')
    a('s_waitcnt lgkmcnt(0)')
    a('s_barrier')
    a(f'v_lshrrev_b32 v{vT}, 3, v{vLane}')
    a(f'v_lshlrev_b32 v{vT}, 2, v{vT}')
    a(f's_lshl_b32 s{sTmp}, s{sW}, 6')
    a(f's_lshl_b32 s{sOff}, s{sRr}, 8')
    a(f's_add_u32 s{sTmp}, s{sTmp}, s{sOff}')
    a(f'v_add_u32 v{vT}, s{sTmp}, v{vT}')
    for i in range(2):
        a(f'ds_read_b32 v{vHn+i}, v{vT} offset:{LDS_HN + 32*i}')
    a('s_waitcnt vmcnt(0) lgkmcnt(0)')
    unpack_fma(a, vWg, 2, vHn, vAg, vT1, vT2)
    unpack_fma(a, vWu, 2, vHn, vAu, vT1, vT2)
    a('s_nop 1')
    for j in range(16):
        a(f'v_add_f32_dpp v{vAg+j}, v{vAg+j}, v{vAg+j} row_ror:8 {DPPM}')
    a(f'v_lshrrev_b32 v{vT}, 4, v{vLane}')
    a(f'v_lshlrev_b32 v{vT}, 9, v{vT}')
    a(f'v_and_b32 v{vT1}, 7, v{vLane}')
    a(f'v_lshl_add_u32 v{vT}, v{vT1}, 5, v{vT}')
    a(f's_lshl_b32 s{sTmp}, s{sW}, 11')
    a(f'v_add_u32 v{vT}, s{sTmp}, v{vT}')
    a('s_mov_b32 s42, 0x00ff00ff')
    a('s_mov_b32 s43, 0x00ff00ff')
    a('s_mov_b64 exec, s[42:43]')
    a(f'ds_write_b128 v{vT}, v[{vAg}:{vAg+3}] offset:{LDS_P}')
    a(f'ds_write_b128 v{vT}, v[{vAg+4}:{vAg+7}] offset:{LDS_P+16}')
    a(f'ds_write_b128 v{vT}, v[{vAu}:{vAu+3}] offset:{LDS_P+256}')
    a(f'ds_write_b128 v{vT}, v[{vAu+4}:{vAu+7}] offset:{LDS_P+272}')
    a('s_mov_b64 exec, -1')
    a('s_waitcnt lgkmcnt(0)')
    a('s_barrier')
    a(f's_cmp_ge_u32 s{sW}, 2')
    a('s_cbranch_scc1 G_done')
    a(f'v_lshlrev_b32 v{vT}, 2, v0')
    for i in range(16):
        a(f'ds_read_b32 v{vPW+i}, v{vT} offset:{LDS_P + 512*i}')
    a('s_waitcnt lgkmcnt(0)')
    a(f'v_add_f32 v{vT1}, v{vPW}, v{vPW+1}')
    for i in range(2, 16):
        a(f'v_add_f32 v{vT1}, v{vT1}, v{vPW+i}')
    a(f'v_lshrrev_b32 v{vT2}, 6, v0')
    a(f'v_mul_u32_u24 v{vT2}, 7168, v{vT2}')
    a(f'v_and_b32 v{vT}, 63, v0')
    a(f'v_lshl_add_u32 v{vT}, v{vT}, 2, v{vT2}')
    a(f'buffer_store_dword v{vT1}, v{vT}, s[{SPG}:{SPG+3}], 0 offen')
    a.label('G_done')
    a('s_endpgm')
    return 108


def gelu_mul(a, vG, vU, t0, t1, t2):
    a(f'v_mul_f32 v{t0}, v{vG}, v{vG}')
    a(f'v_mul_f32 v{t0}, v{t0}, v{vG}')
    a(f'v_mov_b32 v{t1}, 0x3d372713')
    a(f'v_fma_f32 v{t0}, v{t0}, v{t1}, v{vG}')
    a(f'v_mul_f32 v{t0}, 0x3f4c422a, v{t0}')
    a(f'v_mul_f32 v{t0}, 0x4038aa3b, v{t0}')
    a(f'v_exp_f32 v{t0}, v{t0}')
    a('s_nop 0')
    a(f'v_add_f32 v{t0}, 1.0, v{t0}')
    a(f'v_rcp_f32 v{t1}, v{t0}')
    a('s_nop 0')
    a(f'v_fma_f32 v{t2}, -v{t0}, v{t1}, 1.0')
    a(f'v_fma_f32 v{t1}, v{t2}, v{t1}, v{t1}')
    a(f'v_fma_f32 v{t1}, v{t1}, -2.0, 1.0')
    a(f'v_add_f32 v{t1}, 1.0, v{t1}')
    a(f'v_mul_f32 v{t0}, 0.5, v{vG}')
    a(f'v_mul_f32 v{t0}, v{t0}, v{t1}')
    rnd(a, t0, t1)
    a(f'v_mul_f32 v{vG}, v{t0}, v{vU}')
    rnd(a, vG, t1)


def gen_down(a):
    vLane, vT, vT1, vT2 = 0, 2, 3, 4
    vPG = 8
    vWd = 24
    vAct = 52
    vAcc = 60
    sRr, sCc = 15, 3
    SD, SPG, SPD = 16, 20, 24
    sTmp, sOff = 28, 29
    LDS_A = 0; LDS_P = 256
    a.label('down_kernel')
    a('s_cmp_ge_u32 s2, 256')
    a('s_cbranch_scc1 D_done')
    a('s_load_dwordx2 s[4:5], s[0:1], 64')
    a('s_load_dwordx2 s[6:7], s[0:1], 88')
    a(f's_lshr_b32 s{sRr}, s2, 3')
    a(f's_and_b32 s{sCc}, s2, 7')
    a('s_waitcnt lgkmcnt(0)')
    a(f's_mul_i32 s{sTmp}, s{sRr}, {56*1024}')
    a(f's_lshl_b32 s{sOff}, s{sCc}, 7')
    a(f's_add_u32 s{sTmp}, s{sTmp}, s{sOff}')
    srd_off(a, SD, 4, 5, sTmp, 'rem:1835008')
    a(f's_mul_i32 s{sTmp}, s{sRr}, 224')
    a(f's_add_u32 s{sTmp}, s{sTmp}, {WS_PG}')
    srd_off(a, SPG, 6, 7, sTmp, 15 * 7168 + 224)
    a(f's_lshl_b32 s{sTmp}, s{sRr}, 11')
    a(f's_lshl_b32 s{sOff}, s{sCc}, 8')
    a(f's_add_u32 s{sTmp}, s{sTmp}, s{sOff}')
    a(f's_add_u32 s{sTmp}, s{sTmp}, {WS_PD}')
    srd_off(a, SPD, 6, 7, sTmp, 256)
    a(f'v_min_u32 v{vT}, 55, v0')
    a(f'v_lshlrev_b32 v{vT}, 2, v{vT}')
    for k in range(16):
        a(f's_mov_b32 s{sOff}, {k*7168}')
        a(f'buffer_load_dword v{vPG+k}, v{vT}, s[{SPG}:{SPG+3}], s{sOff} offen')
    a(f'v_lshrrev_b32 v{vT}, 3, v0')
    a(f'v_lshlrev_b32 v{vT}, 10, v{vT}')
    a(f'v_and_b32 v{vT1}, 7, v0')
    a(f'v_lshl_add_u32 v{vT}, v{vT1}, 4, v{vT}')
    for i in range(7):
        a(f's_mov_b32 s{sOff}, {i*8192}')
        a(f'buffer_load_dwordx4 v[{vWd+4*i}:{vWd+4*i+3}], v{vT}, s[{SD}:{SD+3}], s{sOff} offen{TNT}')
    a('s_waitcnt vmcnt(7)')
    vG, vU = 5, 6
    a(f'v_add_f32 v{vG}, v{vPG}, v{vPG+2}')
    a(f'v_add_f32 v{vU}, v{vPG+1}, v{vPG+3}')
    for r in range(2, 8):
        a(f'v_add_f32 v{vG}, v{vG}, v{vPG+2*r}')
        a(f'v_add_f32 v{vU}, v{vU}, v{vPG+2*r+1}')
    rnd(a, vG, vT)
    rnd(a, vU, vT)
    gelu_mul(a, vG, vU, vT, vT1, vT2)
    a(f'v_lshlrev_b32 v{vT}, 2, v0')
    a(f'ds_write_b32 v{vT}, v{vG} offset:{LDS_A}')
    a(f'v_lshrrev_b32 v{vT}, 3, v0')
    a(f'v_lshlrev_b32 v{vT}, 2, v{vT}')
    a('s_waitcnt lgkmcnt(0)')
    for i in range(7):
        a(f'ds_read_b32 v{vAct+i}, v{vT} offset:{LDS_A + 32*i}')
    a('s_waitcnt vmcnt(0) lgkmcnt(0)')
    unpack_fma(a, vWd, 7, vAct, vAcc, vT1, vT2)
    a('s_nop 1')
    for j in range(8):
        a(f'v_add_f32_dpp v{vAcc+j}, v{vAcc+j}, v{vAcc+j} row_ror:8 {DPPM}')
    a(f'v_lshrrev_b32 v{vT}, 4, v0')
    a(f'v_lshlrev_b32 v{vT}, 8, v{vT}')
    a(f'v_and_b32 v{vT1}, 7, v0')
    a(f'v_lshl_add_u32 v{vT}, v{vT1}, 5, v{vT}')
    a('s_mov_b32 s30, 0x00ff00ff')
    a('s_mov_b32 s31, 0x00ff00ff')
    a('s_mov_b64 exec, s[30:31]')
    a(f'ds_write_b128 v{vT}, v[{vAcc}:{vAcc+3}] offset:{LDS_P}')
    a(f'ds_write_b128 v{vT}, v[{vAcc+4}:{vAcc+7}] offset:{LDS_P+16}')
    a('s_mov_b64 exec, -1')
    a(f'v_lshlrev_b32 v{vT}, 2, v0')
    a('s_waitcnt lgkmcnt(0)')
    for i in range(4):
        a(f'ds_read_b32 v{vPG+i}, v{vT} offset:{LDS_P + 256*i}')
    a('s_waitcnt lgkmcnt(0)')
    a(f'v_add_f32 v{vT1}, v{vPG}, v{vPG+1}')
    a(f'v_add_f32 v{vT2}, v{vPG+2}, v{vPG+3}')
    a(f'v_add_f32 v{vT1}, v{vT1}, v{vT2}')
    a(f'buffer_store_dword v{vT1}, v{vT}, s[{SPD}:{SPD+3}], 0 offen')
    a.label('D_done')
    a('s_endpgm')
    return 68


def gen_final(a):
    vT, vT1, vT2 = 2, 3, 4
    vP = 8
    SPD, SH, SO = 16, 20, 24
    sTmp, sOff = 28, 29
    a.label('final_kernel')
    a('s_cmp_ge_u32 s2, 8')
    a('s_cbranch_scc1 F_done')
    a('s_load_dwordx2 s[4:5], s[0:1], 72')
    a('s_load_dwordx2 s[6:7], s[0:1], 88')
    a('s_waitcnt lgkmcnt(0)')
    a(f's_lshl_b32 s{sTmp}, s2, 8')
    a(f's_add_u32 s{sTmp}, s{sTmp}, {WS_PD}')
    srd_off(a, SPD, 6, 7, sTmp, 31 * 2048 + 256)
    a(f's_lshl_b32 s{sTmp}, s2, 8')
    a(f's_add_u32 s{sTmp}, s{sTmp}, {WS_H}')
    srd_off(a, SH, 6, 7, sTmp, 256)
    a(f's_lshl_b32 s{sTmp}, s2, 7')
    srd_off(a, SO, 4, 5, sTmp, 128)
    a(f'v_lshlrev_b32 v{vT}, 2, v0')
    a(f'buffer_load_dword v{vT2}, v{vT}, s[{SH}:{SH+3}], 0 offen')
    for r in range(32):
        if r % 2 == 0:
            a(f's_mov_b32 s{sOff}, {r*2048}')
        a(f'buffer_load_dword v{vP+r}, v{vT}, s[{SPD}:{SPD+3}], s{sOff} offen offset:{(r%2)*2048}')
    a('s_waitcnt vmcnt(0)')
    a(f'v_add_f32 v{vT1}, v{vP}, v{vP+1}')
    for r in range(2, 32):
        a(f'v_add_f32 v{vT1}, v{vT1}, v{vP+r}')
    rnd(a, vT1, vT)
    a(f'v_add_f32 v{vT1}, v{vT2}, v{vT1}')
    a(f'v_cvt_pk_bf16_f32 v{vT1}, v{vT1}, v{vT1}')
    a(f'v_lshlrev_b32 v{vT}, 1, v0')
    a(f'buffer_store_short v{vT1}, v{vT}, s[{SO}:{SO+3}], 0 offen')
    a.label('F_done')
    a('s_endpgm')
    return 40


def build(W=16, G=4, NT=' nt', MAP='contig', PREF=False):
    hdr = open('cdna_kernels/%s.s.ref' % NAME).read().split('\n')
    cm = [l for l in hdr if l.startswith(';') and '@launch' not in l and 'Override launch' not in l and 'grid=ceil' not in l]
    out = []
    out += cm
    out.append('; @launch kernel=attn_kernel grid=(256,1,1) block=(1024,1,1) lds=%d' % A_LDS_SIZE)
    out.append('; @launch kernel=wo_kernel grid=(256,1,1) block=(256,1,1) lds=4608')
    out.append('; @launch kernel=geglu_kernel grid=(224,1,1) block=(256,1,1) lds=10304')
    out.append('; @launch kernel=down_kernel grid=(256,1,1) block=(64,1,1) lds=1280')
    out.append('; @launch kernel=final_kernel grid=(8,1,1) block=(64,1,1) lds=0')
    out.append('.amdgcn_target "amdgcn-amd-amdhsa--gfx950"')
    out.append('.text')
    descs = []
    for name, fn in (('attn_kernel', lambda a: gen_attn(a, W, G, NT, MAP, PREF)), ('wo_kernel', gen_wo),
                     ('geglu_kernel', gen_geglu), ('down_kernel', gen_down), ('final_kernel', gen_final)):
        a = Asm()
        a.raw(f'.globl {name}')
        a.raw('.p2align 8')
        a.raw(f'.type {name},@function')
        nv = fn(a)
        out.append(a.text())
        descs.append(kernel_desc(name, nv))
    out.append('.section .rodata,"a"')
    for d in descs:
        out.append('.p2align 6')
        out.append(d)
    return '\n'.join(out)


if __name__ == '__main__':
    import os
    txt = build(W=int(os.environ.get('W', '16')), G=int(os.environ.get('G', '4')),
                NT=(' ' + os.environ.get('POL', 'nt')).rstrip(), MAP=os.environ.get('MAP', 'contig'), PREF=os.environ.get('PREF', '0') == '1')
    probs = check_hazards(txt)
    path = sys.argv[1] if len(sys.argv) > 1 else 'cdna_kernels/%s.s' % NAME
    open(path, 'w').write(txt)
    print('written', path, 'hazards:', len(probs))
```
